```python
import torch

def _softmax(x, axis=-1):
    return torch.softmax(x, dim=axis)
def _gelu(x):
    return torch.nn.functional.gelu(x, approximate="tanh")
def _silu(x):
    return torch.nn.functional.silu(x)
def _sigmoid(x):
    return torch.sigmoid(x)
def _layernorm(x, axis=-1, eps=1e-5):
    m = x.mean(dim=axis, keepdim=True)
    v = x.var(dim=axis, keepdim=True, unbiased=False)
    return (x - m) / torch.sqrt(v + eps)
def _scatter_add(tgt, idx, src, axis=0):
    return tgt.clone().index_add_(axis, idx, src)
def _segment_sum(src, seg, n):
    out = torch.zeros((n,) + src.shape[1:], dtype=src.dtype)
    return out.index_add_(0, seg, src)
def _pad(x, pw):
    flat = tuple(v for pair in reversed(pw) for v in pair)
    return torch.nn.functional.pad(x, flat)

kernel_name = 'recurrent_scan__ssm_conv_s5__glu_gated_glu__prompt'

def setup_inputs():

    _w = (lambda a: (lambda t: t.to(torch.bfloat16) if t.is_floating_point() else t)(torch.as_tensor(a)))
    def _A_setup():
        B, S, D = 1, 2048, 640
        P = D
        Lambda_re = -0.5 * (lambda _x: torch.exp(torch.as_tensor(_x)))((lambda *s: torch.randn(*s, dtype=torch.bfloat16) * 0.2)(P))
        Lambda_im = (lambda *s: torch.randn(*s, dtype=torch.bfloat16) * 0.8)(P) * 1.0
        B_re = (lambda *s: torch.randn(*s, dtype=torch.bfloat16) * 0.2)(P, D) * (D ** -0.5)
        B_im = (lambda *s: torch.randn(*s, dtype=torch.bfloat16) * 0.2)(P, D) * (D ** -0.5)
        C_re = (lambda *s: torch.randn(*s, dtype=torch.bfloat16) * 0.2)(D, P) * (P ** -0.5)
        C_im = (lambda *s: torch.randn(*s, dtype=torch.bfloat16) * 0.2)(D, P) * (P ** -0.5)
        log_dt = (lambda *s: torch.randn(*s, dtype=torch.bfloat16) * 0.2)(P) * 0.3 - 2.0
        Dskip = (lambda *s: torch.randn(*s, dtype=torch.bfloat16) * 0.05)(D)
        return {
            "x": _w((lambda *s: torch.randn(*s, dtype=torch.bfloat16) * 0.05)(B, S, D)),
            "Lambda_re": _w(Lambda_re),
            "Lambda_im": _w(Lambda_im),
            "B_re": _w(B_re),
            "B_im": _w(B_im),
            "C_re": _w(C_re),
            "C_im": _w(C_im),
            "log_dt": _w(log_dt),
            "Dskip": _w(Dskip),
        }
    _A_in = _A_setup()

    def _B_setup():
        B, S, D, F = 1, 2048, 640, 1536
        return {
            "x": _w((lambda *s: torch.randn(*s, dtype=torch.bfloat16) * 0.05)(B, S, D)),
            "w_gate": _w((lambda *s: torch.randn(*s, dtype=torch.bfloat16) * 0.05)(D, F)),
            "w_up": _w((lambda *s: torch.randn(*s, dtype=torch.bfloat16) * 0.05)(D, F)),
            "w_down": _w((lambda *s: torch.randn(*s, dtype=torch.bfloat16) * 0.05)(F, D)),
        }
    _B_in = _B_setup()

    return {
        "A_x": _A_in["x"],
        "A_Lambda_re": _A_in["Lambda_re"],
        "A_Lambda_im": _A_in["Lambda_im"],
        "A_B_re": _A_in["B_re"],
        "A_B_im": _A_in["B_im"],
        "A_C_re": _A_in["C_re"],
        "A_C_im": _A_in["C_im"],
        "A_log_dt": _A_in["log_dt"],
        "A_Dskip": _A_in["Dskip"],
        "B_x": _B_in["x"],
        "B_w_gate": _B_in["w_gate"],
        "B_w_up": _B_in["w_up"],
        "B_w_down": _B_in["w_down"],
    }

def reference(A_x, A_Lambda_re, A_Lambda_im, A_B_re, A_B_im, A_C_re, A_C_im, A_log_dt, A_Dskip, B_x, B_w_gate, B_w_up, B_w_down):
    def _A_ref(x, Lambda_re, Lambda_im, B_re, B_im, C_re, C_im, log_dt, Dskip):
        Bsz, L, H = x.shape
        Lam = Lambda_re + 1j * Lambda_im
        Bmat = B_re + 1j * B_im
        Cmat = C_re + 1j * C_im
        dt = torch.exp(log_dt)
        Lam_bar = torch.exp(dt * Lam)
        B_bar = ((Lam_bar - 1.0) / Lam)[:, None] * Bmat
        Bu = torch.einsum("bld,pd->blp", x + 0j, B_bar)
        h = torch.zeros_like(Bu[:, 0, :])
        hs = []
        for t in range(L):
            h = Lam_bar[None, :] * h + Bu[:, t, :]
            hs.append(h)
        hseq = torch.stack(hs, 1)
        y = 2.0 * torch.einsum("blp,dp->bld", hseq, Cmat).real + x * Dskip[None, None, :]
        return y

    def _B_ref(x, w_gate, w_up, w_down):
        g = torch.einsum("bsd,df->bsf", x, w_gate)
        u = torch.einsum("bsd,df->bsf", x, w_up)
        h = _sigmoid(g) * u
        return torch.einsum("bsf,fd->bsd", h, w_down)

    x = A_x
    xn = _layernorm(x, axis=-1)
    s = _A_ref(xn, A_Lambda_re, A_Lambda_im, A_B_re, A_B_im, A_C_re, A_C_im, A_log_dt, A_Dskip)
    g = _silu(_B_ref(xn, B_w_gate, B_w_up, B_w_down))
    return x + s * g
```

```python
import sys
XN=0; WGT=4<<20; WUT=6<<20; WDT=8<<20; BU=12<<20; H=24<<20
WSZ=268435456
class K:
    def __init__(s, name, grid, block, lds=0, vgpr=128):
        s.name=name; s.grid=grid; s.block=block; s.lds=lds; s.vgpr=vgpr; s.L=[]
    def e(s, t):
        for l in t.strip().split("\n"): s.L.append("    "+l.strip())
    def srd(s, reg, slot, size):
        s.e(f"s_load_dwordx2 s[{reg}:{reg+1}], s[0:1], {slot*8}\ns_mov_b32 s{reg+2}, {size}\ns_mov_b32 s{reg+3}, 0x20000")
    def text(s):
        return f".globl {s.name}\n.p2align 8\n.type {s.name},@function\n{s.name}:\n" + f"    s_cmp_ge_u32 s2, {s.grid}\n    s_cbranch_scc1 L_{s.name}_end\n" + "\n".join(s.L) + f"\nL_{s.name}_end:\n    s_endpgm\n"
    def desc(s):
        return f""".p2align 6
.amdhsa_kernel {s.name}
  .amdhsa_next_free_vgpr {s.vgpr}
  .amdhsa_next_free_sgpr 102
  .amdhsa_accum_offset {s.vgpr}
  .amdhsa_group_segment_fixed_size 0
  .amdhsa_kernarg_size 128
  .amdhsa_user_sgpr_count 2
  .amdhsa_user_sgpr_kernarg_segment_ptr 1
  .amdhsa_system_sgpr_workgroup_id_x 1
.end_amdhsa_kernel
"""
def wave_sum(k, v, t):
    for off in (0x041F,0x081F,0x101F,0x201F,0x401F):
        k.e(f"ds_swizzle_b32 v{t}, v{v} offset:{off}\ns_waitcnt lgkmcnt(0)\nv_add_f32 v{v}, v{v}, v{t}")
    k.e(f"v_mov_b32 v{t}, v{v}\ns_nop 1\nv_permlane32_swap_b32 v{t}, v{v}\ns_nop 1\nv_add_f32 v{v}, v{v}, v{t}")
def rbf(k, v):
    k.e(f"v_cvt_pk_bf16_f32 v{v}, v{v}, v{v}\nv_and_b32 v{v}, 0xffff0000, v{v}")

def k_ln():
    k = K("ln_kernel", 512, 256, vgpr=64)
    k.srd(8, 0, 2621440); k.srd(12, 15, WSZ)
    k.e("""v_lshrrev_b32 v1, 6, v0
    v_and_b32 v2, 63, v0
    s_lshl_b32 s3, s2, 2
    v_add_u32 v1, s3, v1
    v_mul_u32_u24 v1, 1280, v1
    v_lshl_add_u32 v1, v2, 2, v1
    s_waitcnt lgkmcnt(0)""")
    for j in range(5): k.e(f"buffer_load_dword v{10+j}, v1, s[8:11], 0 offen offset:{256*j}")
    k.e("s_waitcnt vmcnt(0)")
    for j in range(5):
        k.e(f"v_lshlrev_b32 v{20+2*j}, 16, v{10+j}\nv_and_b32 v{21+2*j}, 0xffff0000, v{10+j}")
    k.e("v_mov_b32 v3, 0")
    for j in range(10): k.e(f"v_add_f32 v3, v3, v{20+j}")
    wave_sum(k, 3, 4)
    k.e("v_mul_f32 v3, 0x3acccccd, v3")
    k.e("v_mov_b32 v5, 0")
    for j in range(10): k.e(f"v_sub_f32 v4, v{20+j}, v3\nv_fmac_f32 v5, v4, v4")
    wave_sum(k, 5, 4)
    k.e("v_mul_f32 v5, 0x3acccccd, v5")
    rbf(k,3); rbf(k,5)
    k.e("v_add_f32 v5, 0x3727c5ac, v5"); rbf(k,5)
    k.e("v_sqrt_f32 v5, v5\ns_nop 0"); rbf(k,5)
    k.e("v_rcp_f32 v5, v5\ns_nop 0")
    for j in range(10):
        k.e(f"v_sub_f32 v{20+j}, v{20+j}, v3"); rbf(k,20+j); k.e(f"v_mul_f32 v{20+j}, v{20+j}, v5")
    for j in range(5):
        k.e(f"v_cvt_pk_bf16_f32 v{10+j}, v{20+2*j}, v{21+2*j}\nbuffer_store_dword v{10+j}, v1, s[12:15], 0 offen offset:{256*j}")
    return k
def k_tr():
    k = K("tr_kernel", 3840, 256, vgpr=32)
    k.srd(8,10,1966080); k.srd(12,11,1966080); k.srd(16,12,1966080); k.srd(20,15,WSZ)
    k.e(f"""s_lshl_b32 s3, s2, 8
    v_add_u32 v1, s3, v0
    v_lshrrev_b32 v2, 9, v1
    s_mov_b32 s4, 0x55555556
    v_mul_hi_u32 v2, v2, s4
    v_mul_u32_u24 v3, 1536, v2
    v_sub_u32 v3, v1, v3
    v_mul_u32_u24 v3, 640, v3
    v_add_lshl_u32 v3, v3, v2, 1
    v_lshrrev_b32 v4, 7, v1
    s_mov_b32 s4, 0x33333334
    v_mul_hi_u32 v4, v4, s4
    v_mul_u32_u24 v5, 640, v4
    v_sub_u32 v5, v1, v5
    v_mul_u32_u24 v5, 1536, v5
    v_add_lshl_u32 v5, v5, v4, 1
    v_lshlrev_b32 v1, 1, v1
    s_waitcnt lgkmcnt(0)
    buffer_load_ushort v6, v1, s[8:11], 0 offen
    buffer_load_ushort v7, v1, s[12:15], 0 offen
    buffer_load_ushort v8, v1, s[16:19], 0 offen
    s_mov_b32 s4, {WGT}
    s_mov_b32 s5, {WUT}
    s_mov_b32 s6, {WDT}
    s_waitcnt vmcnt(0)
    buffer_store_short v6, v3, s[20:23], s4 offen
    buffer_store_short v7, v3, s[20:23], s5 offen
    buffer_store_short v8, v5, s[20:23], s6 offen""")
    return k
def kloop(k, lab, K_, a, bs):
    k.e(f"s_mov_b32 s30, 0\n{lab}:")
    k.e(f"s_add_u32 s31, {a[2]}, s30")
    for u in range(4): k.e(f"buffer_load_dwordx4 v[{64+4*u}:{67+4*u}], v{a[0]}, s[{a[1]}:{a[1]+3}], s31 offen offset:{32*u}")
    for i,b in enumerate(bs):
        k.e(f"s_add_u32 s31, {b[2]}, s30")
        for u in range(4): k.e(f"buffer_load_dwordx4 v[{80+16*i+4*u}:{83+16*i+4*u}], v{b[0]}, s[{b[1]}:{b[1]+3}], s31 offen offset:{32*u}")
    k.e("s_waitcnt vmcnt(0)")
    for i,b in enumerate(bs):
        for u in range(4):
            k.e(f"v_mfma_f32_32x32x16_bf16 v[{b[3]}:{b[3]+15}], v[{64+4*u}:{67+4*u}], v[{80+16*i+4*u}:{83+16*i+4*u}], v[{b[3]}:{b[3]+15}]")
    k.e(f"s_add_u32 s30, s30, 128\ns_cmp_lt_u32 s30, {K_*2}\ns_cbranch_scc1 {lab}")
def lanes(k):
    k.e("v_and_b32 v1, 31, v0\nv_lshrrev_b32 v2, 5, v0")
def zero(k, a, n):
    for i in range(n): k.e(f"v_mov_b32 v{a+i}, 0")
def sigmoid(k, d, s):
    k.e(f"v_mul_f32 v{d}, 0xbfb8aa3b, v{s}\nv_exp_f32 v{d}, v{d}\ns_nop 0\nv_add_f32 v{d}, 1.0, v{d}\nv_rcp_f32 v{d}, v{d}\ns_nop 0")
def k_g1s():
    k = K("g1s_kernel", 64*20, 64)
    k.srd(8,15,WSZ); k.srd(12,3,819200); k.srd(16,4,819200)
    lanes(k)
    k.e("""s_and_b32 s4, s2, 63
    s_lshr_b32 s5, s2, 6
    v_mul_u32_u24 v3, 1280, v1
    v_lshl_add_u32 v3, v2, 4, v3
    s_mul_i32 s6, s4, 40960
    s_mul_i32 s7, s5, 40960
    s_waitcnt lgkmcnt(0)""")
    zero(k,32,32)
    kloop(k,"L_g1s",640,(3,8,"s6"),[(3,12,"s7",32),(3,16,"s7",48)])
    k.e(f"""s_nop 15
    s_mul_i32 s6, s4, {32*5120}
    s_lshl_b32 s7, s5, 7
    s_add_u32 s6, s6, s7
    s_add_u32 s6, s6, {BU}
    v_mul_u32_u24 v4, {4*5120}, v2
    v_lshl_add_u32 v4, v1, 2, v4""")
    for r in range(16):
        row = 8*(r>>2)+(r&3)
        k.e(f"s_add_u32 s7, s6, {row*5120}\nbuffer_store_dword v{32+r}, v4, s[8:11], s7 offen\nbuffer_store_dword v{48+r}, v4, s[8:11], s7 offen offset:2560")
    return k
def k_g1g():
    k = K("g1g_kernel", 64*48, 64)
    k.srd(8,15,WSZ)
    lanes(k)
    k.e(f"""s_and_b32 s4, s2, 63
    s_lshr_b32 s5, s2, 6
    v_mul_u32_u24 v3, 1280, v1
    v_lshl_add_u32 v3, v2, 4, v3
    s_mul_i32 s6, s4, 40960
    s_mul_i32 s7, s5, 40960
    s_add_u32 s20, s7, {WGT}
    s_add_u32 s21, s7, {WUT}
    s_waitcnt lgkmcnt(0)""")
    zero(k,32,32)
    kloop(k,"L_g1g",640,(3,8,"s6"),[(3,8,"s20",32),(3,8,"s21",48)])
    k.e(f"""s_nop 15
    s_mul_i32 s6, s4, {32*5632}
    s_lshl_b32 s7, s5, 6
    s_add_u32 s6, s6, s7
    s_add_u32 s6, s6, {H+2560}
    v_mul_u32_u24 v4, {4*5632}, v2
    v_lshl_add_u32 v4, v1, 1, v4""")
    for r in range(16):
        row = 8*(r>>2)+(r&3)
        sigmoid(k, 5, 32+r)
        k.e(f"v_mul_f32 v5, v5, v{48+r}\nv_cvt_pk_bf16_f32 v{32+r}, v5, v5\ns_add_u32 s7, s6, {row*5632}\nbuffer_store_short v{32+r}, v4, s[8:11], s7 offen")
    return k
def k_scan():
    k = K("scan_kernel", 10, 64)
    k.srd(8,15,WSZ); k.srd(12,1,1280); k.srd(16,2,1280); k.srd(20,7,1280)
    k.e("""s_lshl_b32 s3, s2, 6
    v_add_u32 v1, s3, v0
    v_lshlrev_b32 v2, 1, v1
    v_lshlrev_b32 v3, 2, v1
    s_waitcnt lgkmcnt(0)
    buffer_load_ushort v4, v2, s[12:15], 0 offen
    buffer_load_ushort v5, v2, s[16:19], 0 offen
    buffer_load_ushort v6, v2, s[20:23], 0 offen
    s_waitcnt vmcnt(0)
    v_lshlrev_b32 v4, 16, v4
    v_lshlrev_b32 v5, 16, v5
    v_lshlrev_b32 v6, 16, v6
    v_mul_f32 v6, 0x3fb8aa3b, v6
    v_exp_f32 v6, v6
    s_nop 0""")
    rbf(k,6)
    k.e("""v_mul_f32 v7, v6, v4
    v_mul_f32 v8, v6, v5
    v_mul_f32 v7, 0x3fb8aa3b, v7
    v_exp_f32 v7, v7
    v_mul_f32 v8, 0.15915494309189535, v8
    v_fract_f32 v8, v8
    v_cos_f32 v9, v8
    v_sin_f32 v10, v8
    s_nop 0
    v_mul_f32 v9, v9, v7
    v_mul_f32 v10, v10, v7
    v_mul_f32 v11, v4, v4
    v_fmac_f32 v11, v5, v5
    v_rcp_f32 v11, v11
    v_add_f32 v12, -1.0, v9
    v_mul_f32 v13, v12, v4
    v_fmac_f32 v13, v10, v5
    v_mul_f32 v14, v10, v4
    v_fma_f32 v14, -v12, v5, v14
    v_add_f32 v11, v11, v11
    v_mul_f32 v13, v13, v11
    v_mul_f32 v14, v14, v11
    v_mov_b32 v16, 0
    v_mov_b32 v17, 0""")
    U=16
    k.e(f"s_mov_b32 s4, {BU}\ns_mov_b32 s5, {H}\ns_mov_b32 s6, 0\nL_scan:")
    for u in range(U):
        k.e(f"s_add_u32 s7, s4, {u*5120}\nbuffer_load_dword v{32+2*u}, v3, s[8:11], s7 offen\nbuffer_load_dword v{33+2*u}, v3, s[8:11], s7 offen offset:2560")
    k.e("s_waitcnt vmcnt(0)")
    for u in range(U):
        k.e(f"""v_fma_f32 v18, v9, v16, v{32+2*u}
        v_fma_f32 v19, v9, v17, v{33+2*u}
        v_fma_f32 v18, -v10, v17, v18
        v_fma_f32 v17, v10, v16, v19
        v_mov_b32 v16, v18
        v_mul_f32 v20, v13, v16
        v_fma_f32 v20, -v14, v17, v20
        v_mul_f32 v21, -v13, v17
        v_fma_f32 v21, -v14, v16, v21
        v_cvt_pk_bf16_f32 v{64+u}, v20, v21
        s_add_u32 s7, s5, {u*5632}
        buffer_store_short v{64+u}, v2, s[8:11], s7 offen
        buffer_store_short_d16_hi v{64+u}, v2, s[8:11], s7 offen offset:1280""")
    k.e(f"s_add_u32 s4, s4, {U*5120}\ns_add_u32 s5, s5, {U*5632}\ns_add_u32 s6, s6, 1\ns_cmp_lt_u32 s6, {2048//U}\ns_cbranch_scc1 L_scan")
    return k
def k_g2():
    k = K("g2_kernel", 64*20, 64)
    k.srd(8,15,WSZ); k.srd(12,5,819200); k.srd(16,6,819200); k.srd(20,0,2621440); k.srd(24,13,5242880); k.srd(36,8,1280)
    lanes(k)
    k.e(f"""s_and_b32 s4, s2, 63
    s_lshr_b32 s5, s2, 6
    v_mul_u32_u24 v3, 1280, v1
    v_lshl_add_u32 v3, v2, 4, v3
    v_mul_u32_u24 v4, 5632, v1
    v_lshl_add_u32 v4, v2, 4, v4
    v_mul_u32_u24 v5, 3072, v1
    v_lshl_add_u32 v5, v2, 4, v5
    s_mul_i32 s6, s4, {32*5632}
    s_add_u32 s6, s6, {H}
    s_add_u32 s40, s6, 1280
    s_add_u32 s41, s6, 2560
    s_mul_i32 s7, s5, 40960
    s_mul_i32 s42, s5, {32*3072}
    s_add_u32 s42, s42, {WDT}
    s_waitcnt lgkmcnt(0)""")
    zero(k,32,32)
    kloop(k,"L_g2a",640,(4,8,"s6"),[(3,12,"s7",32)])
    kloop(k,"L_g2b",640,(4,8,"s40"),[(3,16,"s7",32)])
    kloop(k,"L_g2c",1536,(4,8,"s41"),[(5,8,"s42",48)])
    k.e(f"""s_nop 15
    s_mul_i32 s6, s4, {32*1280}
    s_lshl_b32 s7, s5, 6
    s_add_u32 s6, s6, s7
    v_mul_u32_u24 v4, {4*1280}, v2
    v_lshl_add_u32 v4, v1, 1, v4
    v_lshlrev_b32 v6, 1, v4
    v_lshlrev_b32 v7, 1, v1
    buffer_load_ushort v8, v7, s[36:39], s7 offen""")
    for r in range(16):
        row = 8*(r>>2)+(r&3)
        k.e(f"s_add_u32 s7, s6, {row*1280}\nbuffer_load_ushort v{64+r}, v4, s[20:23], s7 offen\nbuffer_load_ushort v{80+r}, v4, s[8:11], s7 offen")
    k.e("s_waitcnt vmcnt(0)\nv_lshlrev_b32 v8, 16, v8\ns_lshl_b32 s6, s6, 1")
    for r in range(16):
        row = 8*(r>>2)+(r&3)
        sigmoid(k, 5, 48+r)
        k.e(f"""v_mul_f32 v5, v5, v{48+r}
        v_lshlrev_b32 v{64+r}, 16, v{64+r}
        v_lshlrev_b32 v{80+r}, 16, v{80+r}
        v_fmac_f32 v{32+r}, v{80+r}, v8
        v_fmac_f32 v{64+r}, v{32+r}, v5
        s_add_u32 s7, s6, {row*2560}
        buffer_store_dword v{64+r}, v6, s[24:27], s7 offen""")
    return k
def emit(ks, order=None):
    order = order or ks
    o = "".join(f"; @launch kernel={k.name} grid=({k.grid},1,1) block=({k.block},1,1) lds={k.lds}\n" for k in order)
    o += '.amdgcn_target "amdgcn-amd-amdhsa--gfx950"\n.text\n'
    o += "".join(k.text() for k in ks)
    o += '.section .rodata,"a"\n' + "".join(k.desc() for k in ks)
    return o
def base(): return [k_ln(), k_tr(), k_g1s(), k_g1g(), k_scan(), k_g2()]
if __name__ == "__main__":
    open("base.s","w").write(emit(base()))
```

```python
from gen_base import *
def k_empty(grid=256):
    k = K("empty_kernel", grid, 64, vgpr=32); k.e("s_nop 0"); return k
def k_lat(slot, size, base, n=1000, stride=2560, flags=""):
    k = K("lat_kernel", 1, 64, vgpr=32)
    k.srd(8, slot, size)
    k.e(f"""v_mov_b32 v1, 0
    s_mov_b32 s4, {base}
    s_mov_b32 s5, {n}
    s_waitcnt lgkmcnt(0)
    L_lat:
    buffer_load_dword v2, v1, s[8:11], s4 offen {flags}
    s_waitcnt vmcnt(0)
    s_add_u32 s4, s4, {stride}
    s_sub_u32 s5, s5, 1
    s_cmp_lg_u32 s5, 0
    s_cbranch_scc1 L_lat""")
    return k
b = base()
e = k_empty()
open("p_e1.s","w").write(emit([e]+b))
open("p_e16.s","w").write(emit([e]+b, [e]*16+b))
open("p_lat_bx.s","w").write(emit([k_lat(9,2621440,0)]+b))
open("p_lat_ws0.s","w").write(emit([k_lat(15,WSZ,64<<20)]+b))
open("p_lat_ws1.s","w").write(emit([k_lat(15,WSZ,250<<20)]+b))
l = k_lat(9,2621440,0)
open("p_lat_bx2.s","w").write(emit([l]+b, [l,l]+b))
open("p_lat_wd.s","w").write(emit([k_lat(12,1966080,0,n=1000,stride=1920)]+b))
open("p_lat_x.s","w").write(emit([k_lat(0,2621440,0)]+b))
open("p_lat_out.s","w").write(emit([k_lat(13,5242880,0)]+b))
```

```python
from gen_base import *
def k_stream(mb, flags, store=False):
    k = K("stream_kernel", 256, 256, vgpr=64)
    k.srd(8, 15, WSZ)
    per = mb*(1<<20)//256
    k.e(f"""v_lshlrev_b32 v1, 4, v0
    s_mul_i32 s4, s2, {per}
    s_add_u32 s4, s4, {64<<20}
    s_mov_b32 s5, {per//(4096*8)}
    s_waitcnt lgkmcnt(0)
    L_st:""")
    for u in range(8):
        if store: k.e(f"buffer_store_dwordx4 v[8:11], v1, s[8:11], s4 offen {flags}")
        else: k.e(f"buffer_load_dwordx4 v[{8+4*u}:{11+4*u}], v1, s[8:11], s4 offen {flags}")
        k.e("s_add_u32 s4, s4, 4096\ns_waitcnt vmcnt(12)")
    k.e("""s_sub_u32 s5, s5, 1
    s_cmp_lg_u32 s5, 0
    s_cbranch_scc1 L_st""")
    return k
b = base()
open("p_s128.s","w").write(emit([k_stream(128,"")]+b))
open("p_s128nt.s","w").write(emit([k_stream(128,"nt")]+b))
open("p_s32.s","w").write(emit([k_stream(32,"")]+b))
open("p_s32nt.s","w").write(emit([k_stream(32,"nt")]+b))
open("p_w64.s","w").write(emit([k_stream(64,"sc1",True)]+b))
open("p_w64nt.s","w").write(emit([k_stream(64,"nt",True)]+b))
```

```python
import re

_REG = re.compile(r"(?<![\w.])([vas])(?:(\d+)(?![\w\[])|\[(\d+):(\d+)\])")
TRANS = ("v_exp_f32", "v_log_f32", "v_rcp_f32", "v_rsq_f32", "v_sqrt_f32", "v_sin_f32", "v_cos_f32")


def regs_of(tok):
    out = []
    for m in _REG.finditer(tok):
        k = m.group(1)
        if m.group(2) is not None:
            out.append((k, int(m.group(2))))
        else:
            out += [(k, i) for i in range(int(m.group(3)), int(m.group(4)) + 1)]
    t = tok.strip()
    if re.search(r"\bvcc\b", t):
        out.append(("s", "vcc"))
    if re.search(r"\bm0\b", t):
        out.append(("s", "m0"))
    if re.search(r"\bexec\b", t):
        out.append(("s", "exec"))
    return out


def split_ops(s):
    ops, depth, cur = [], 0, ""
    for ch in s:
        if ch == "[":
            depth += 1
        if ch == "]":
            depth -= 1
        if ch == "," and depth == 0:
            ops.append(cur.strip())
            cur = ""
        else:
            cur += ch
    if cur.strip():
        ops.append(cur.strip())
    return ops


class Ins:
    __slots__ = ("text", "op", "kind", "rd", "wr", "dpp", "srcc", "srcab", "passes", "wide", "lds", "size", "cost")

    def __init__(s, text):
        s.text = text = text.strip()
        parts = text.split(None, 1)
        s.op = op = parts[0]
        rest = parts[1] if len(parts) > 1 else ""
        core = re.sub(r"\b(quad_perm|op_sel|op_sel_hi|neg_lo|neg_hi):\[[^\]]*\]", "", rest)
        ops = split_ops(core)
        s.dpp = "_dpp" in op
        s.srcc = s.srcab = ()
        s.passes = 0
        s.wide = False
        s.lds = False
        R = [regs_of(o) for o in ops]
        flat = lambda l: [x for y in l for x in y]
        s.cost = 4
        if op.startswith("v_mfma"):
            s.kind = "mfma"
            s.wr = R[0]
            s.rd = flat(R[1:])
            s.srcab = R[1] + R[2]
            s.srcc = R[3]
            s.passes = 8 if "32x32x16" in op else 4
            s.cost = 8
        elif op.startswith(("buffer_load", "global_load")):
            s.kind = "vm"
            s.lds = bool(re.search(r"\blds\b", rest))
            if s.lds:
                s.wr = []
                s.rd = flat(R) + [("s", "m0")]
            else:
                s.wr = R[0]
                s.rd = flat(R[1:])
        elif op.startswith(("buffer_store", "global_store")):
            s.kind = "vm"
            s.wr = []
            s.rd = flat(R)
            s.wide = op.endswith(("x3", "x4"))
        elif op.startswith("buffer_atomic"):
            s.kind = "vm"
            s.wr = R[0] if "sc0" in rest else []
            s.rd = flat(R)
        elif op.startswith(("ds_read", "ds_bpermute", "ds_swizzle")):
            s.kind = "ds"
            s.wr = R[0]
            s.rd = flat(R[1:])
        elif op.startswith("ds_"):
            s.kind = "ds"
            s.wr = []
            s.rd = flat(R)
        elif op.startswith(("s_load", "s_memtime", "s_memrealtime")):
            s.kind = "smem"
            s.wr = R[0]
            s.rd = flat(R[1:])
        elif op.startswith("v_"):
            s.kind = "valu"
            if "permlane" in op and "swap" in op:
                s.wr = R[0] + R[1]
                s.rd = R[0] + R[1]
            else:
                s.wr = list(R[0])
                s.rd = flat(R[1:])
                if op.startswith(("v_fmac", "v_pk_fmac", "v_dot2c")) or s.dpp:
                    s.rd = s.rd + R[0]
                if op.startswith(("v_add_co", "v_sub_co", "v_addc_co")):
                    s.wr += R[1]
            if op.startswith(TRANS):
                s.cost = 8
        elif op.startswith(("s_cmp", "s_bitcmp", "s_waitcnt", "s_nop", "s_barrier", "s_cbranch", "s_branch", "s_endpgm",
                            "s_sleep", "s_setprio")):
            s.kind = "salu"
            s.wr = []
            s.rd = flat(R)
        elif op.startswith("s_"):
            s.kind = "salu"
            s.wr = list(R[0])
            s.rd = flat(R[1:])
            if op.startswith(("s_addk", "s_mulk")):
                s.rd = s.rd + R[0]
        else:
            raise ValueError("unknown instruction: " + text)


class Emitter:
    def __init__(s):
        s.lines = []
        s.pos = 0
        s.t = 0
        s.mfma_free = 0
        s.vmq = 0
        s.vm_done = 0
        s.lgq = 0
        s.lg_done = 0
        s.smem_out = False
        s.pend = {}
        s.lastw = {}
        s.store_rd = {}
        s.mf_c = {}
        s.tail = []
        s.nnop = 0
        s.nwait = 0
        s.count = {}
        s.vm_t = [0]
        s.lat = 650
        s.cost_ld = 76
        s.cost_st = 150
        s.win = 8
        s.pre_vm_wait = None
        s.stall_log = []

    def raw(s, text):
        s.lines.append(text)

    def label(s, name):
        s.lines.append(name + ":")

    def comment(s, c):
        s.lines.append("    ; " + c)

    def _put(s, text, states=1, cyc=4):
        s.lines.append("    " + text)
        s.pos += states
        s.t += cyc

    def nop(s, n):
        while n > 0:
            k = min(n, 16)
            s._put(f"s_nop {k-1}", k, 4 * k)
            s.nnop += k
            n -= k

    def _wait(s, vm=None, lg=None):
        parts = []
        if vm is not None and vm > s.vm_done:
            if s.pre_vm_wait is not None:
                h, s.pre_vm_wait = s.pre_vm_wait, None
                h(vm)
                s.pre_vm_wait = h
            while len(s.vm_t) <= s.vmq:
                s.vm_t.append(s.vm_t[-1] + s.cost_ld)
            if s.vm_t[vm] > s.t:
                s.stall_log.append((len(s.lines), s.t, s.vm_t[vm] - s.t))
                s.t = s.vm_t[vm]
            n = min(s.vmq - vm, 63)
            parts.append(f"vmcnt({n})")
            s.vm_done = s.vmq - n
        if lg is not None and (lg > s.lg_done or lg == -1):
            if lg == -1:
                n = 0
                s.smem_out = False
                for r in [r for r, v in s.pend.items() if v[0] == "sm"]:
                    del s.pend[r]
            else:
                n = min(s.lgq - lg, 15)
            parts.append(f"lgkmcnt({n})")
            s.lg_done = s.lgq - n
            if n == 0 and s.smem_out:
                s.smem_out = False
                for r in [r for r, v in s.pend.items() if v[0] == "sm"]:
                    del s.pend[r]
        if parts:
            s._put("s_waitcnt " + " ".join(parts))
            s.nwait += 1

    def wait_vm(s, tok):
        if tok is not None:
            s._wait(vm=tok)

    def wait_lg(s, tok):
        if tok is not None:
            s._wait(lg=tok)

    def wait_all_lg(s):
        if s.smem_out:
            s._wait(lg=-1)
        else:
            s._wait(lg=s.lgq)

    def wait_all_vm(s):
        s._wait(vm=s.vmq)

    def __call__(s, text):
        tok = None
        for l in text.strip().split("\n"):
            l = l.split(";")[0].strip()
            if l:
                tok = s.ins(Ins(l))
        return tok

    def need_states(s, i):
        need = 0

        def req(p, n):
            nonlocal need
            need = max(need, n - (s.pos - p - 1))

        for r in i.rd:
            w = s.lastw.get(r)
            if w is None:
                continue
            k, p, wi = w
            if k == "valu":
                if r[0] in "va":
                    if i.kind == "mfma":
                        req(p, 2)
                    elif i.kind == "valu":
                        if i.dpp and r in i.rd[:1]:
                            req(p, 2)
                        if "permlane" in i.op:
                            req(p, 2)
                        if i.op.startswith(("v_readfirstlane", "v_readlane")):
                            req(p, 1)
                        if wi.op.startswith(TRANS):
                            req(p, 1)
                    elif wi.op.startswith(TRANS):
                        req(p, 1)
                else:
                    if i.kind == "valu":
                        req(p, 2)
                    elif i.kind == "vm":
                        req(p, 5)
                    elif i.kind in ("salu", "smem"):
                        req(p, 1)
            elif k == "mfma":
                big = {4: 8, 8: 12}[wi.passes]
                if i.kind == "mfma":
                    if r in i.srcab:
                        req(p, big)
                    elif list(i.srcc) == list(wi.wr) and i.passes == wi.passes:
                        pass
                    else:
                        req(p, big - 2)
                else:
                    req(p, big)
            elif k == "salu":
                if r == ("s", "m0") and i.kind == "vm":
                    req(p, 1)
        for r in i.wr:
            w = s.lastw.get(r)
            if w is not None and w[0] == "mfma":
                big = {4: 8, 8: 12}[w[2].passes]
                if i.kind != "mfma":
                    req(w[1], big)
                elif list(i.wr) != list(w[2].wr):
                    req(w[1], big)
            if r in s.store_rd and i.kind in ("valu", "mfma", "ds", "vm"):
                req(s.store_rd[r], 2)
            if r in s.mf_c and i.kind == "valu":
                p, ps = s.mf_c[r]
                req(p, {4: 3, 8: 7}[ps])
        return need

    def pending(s, i):
        vm = lg = None
        for r in list(i.rd) + list(i.wr):
            p = s.pend.get(r)
            if p is None:
                continue
            if p[0] == "vm":
                if p[1] > s.vm_done:
                    vm = max(vm or 0, p[1])
            elif p[0] == "lg":
                if p[1] > s.lg_done and lg != -1:
                    lg = max(lg or 0, p[1])
            else:
                lg = -1
        return vm, lg

    def ins(s, i):
        vm, lg = s.pending(i)
        s._wait(vm, lg)
        n = s.need_states(i)
        if n > 0:
            s.nop(n)
        p = s.pos
        tok = None
        if i.kind == "mfma":
            s.t = max(s.t, s.mfma_free)
            s.mfma_free = s.t + 4 * i.passes
        states = 1
        if i.op == "s_nop":
            states = int(i.text.split()[1]) + 1
        s._put(i.text, states, i.cost * states)
        s.count[i.kind] = s.count.get(i.kind, 0) + 1
        for r in i.wr:
            s.lastw[r] = (i.kind, p, i)
            s.pend.pop(r, None)
        if i.kind == "vm":
            while len(s.vm_t) <= s.vmq:
                s.vm_t.append(s.vm_t[-1] + s.cost_ld)
            s.t = max(s.t, s.vm_free())
            big = "x4" in i.op
            c = (s.cost_st if "store" in i.op else s.cost_ld) if big else (40 if "x2" in i.op else 15)
            s.vm_t.append(max(s.vm_t[-1] + c, s.t + s.lat))
            s.vmq += 1
            tok = s.vmq
            for r in i.wr:
                s.pend[r] = ("vm", tok)
            if i.wide:
                for r in i.rd[:4]:
                    s.store_rd[r] = p
        elif i.kind == "ds":
            s.lgq += 1
            tok = s.lgq
            for r in i.wr:
                s.pend[r] = ("lg", tok)
        elif i.kind == "smem":
            s.smem_out = True
            for r in i.wr:
                s.pend[r] = ("sm", 0)
        elif i.kind == "mfma":
            for r in i.srcc:
                s.mf_c[r] = (p, i.passes)
        return tok

    def vm_free(s):
        k = s.vmq + 1 - s.win
        return s.vm_t[k] if 0 < k < len(s.vm_t) else 0

    def text(s):
        return "\n".join(s.lines + s.tail) + "\n"
```

```python
from emit import Ins
from gen import *

DPPSW = "quad_perm:[1,0,3,2] row_mask:0xf bank_mask:0xf"
MF = "v_mfma_f32_16x16x32_bf16"
NFB = 10
FB0 = 160
L_FIN = 5 * SLOT


class Slot:
    def __init__(s, kind, **kw):
        s.kind = kind
        s.__dict__.update(kw)


class Task:
    def __init__(s, name, gen, prio=1):
        s.name, s.gen, s.prio = name, gen, prio
        s.cur = None
        s.done = False

    def peek(s):
        while not s.done:
            if s.cur is None:
                try:
                    s.cur = next(s.gen)
                except StopIteration:
                    s.done = True
                    return None
            if isinstance(s.cur, str):
                s.cur = Ins(s.cur)
            if isinstance(s.cur, Ins) or isinstance(s.cur, tuple):
                return s.cur
            if s.cur():
                s.cur = None
                continue
            return None
        return None


class Weaver:
    def __init__(w, g):
        w.g, w.e, w.v, w.cfg = g, g.e, g.v, g.cfg
        w.slots = []
        w.mf = []
        w.frags = []
        w.q = []
        w.qi = 0
        w.tasks = []
        w.mi = 0
        w.ri = 0
        w.nbar = 0
        w.bar_lg = None
        w.bar_vm = None
        w.ev = {}
        w.fragtok = {}
        w.cache = {}
        w.calt = 0
        w.rr = 0

    def add_frag(w, si, kind, s, imm):
        w.frags.append((si, kind, s, imm))
        return len(w.frags) - 1

    def fb(w, f):
        return ar(FB0 + 4 * (f % NFB), 4)

    def rd_addr(w, si, kind, s):
        pos = si % NRING
        hi = pos // 3
        base = (pos % 3) * SLOT
        if kind == "lin":
            return w.v["lin"] + hi, base
        src = w.v[kind]
        if hi == 0:
            return src + s, base
        key = (kind, hi)
        if key not in w.cache:
            d = w.v["rdcur"] + 2 * w.calt
            w.calt ^= 1
            for k in [k for k, x in w.cache.items() if x == d]:
                del w.cache[k]
            w.e(f"v_add_u32 {vr(d)}, {61440*hi}, {vr(src)}\nv_add_u32 {vr(d+1)}, {61440*hi}, {vr(src+1)}")
            w.cache[key] = d
        return w.cache[key] + s, base

    def barrier(w, si):
        e = w.e
        while si not in w.g.tokslot:
            assert w.emit_q(force=True), f"slot {si}: DMA cannot be issued ({w.q[w.qi].get('name')})"
        tok = w.g.tokslot[si]
        if w.bar_vm is not None:
            tok = max(tok, w.bar_vm)
        e._wait(vm=tok, lg=w.bar_lg)
        w.bar_lg = w.bar_vm = None
        e("s_barrier")
        e.t += w.cfg.bar_cost
        w.nbar = si + 1
        if si in w.stamp_at:
            w.g.stamp(w.stamp_at[si])

    def can_read(w):
        f = w.ri
        if f >= len(w.frags):
            return False
        return f < NFB or w.last_use[f - NFB] < w.mi

    def emit_read(w):
        f = w.ri
        si, kind, s, imm = w.frags[f]
        if si >= w.nbar:
            w.barrier(si)
        a, base = w.rd_addr(si, kind, s)
        w.fragtok[f] = w.e(f"ds_read_b128 {w.fb(f)}, {vr(a)} offset:{base+imm}")
        w.ri += 1

    def emit_q(w, force=False):
        if w.qi >= len(w.q):
            return False
        it = w.q[w.qi]
        if not it["ready"]():
            if force:
                guard = 0
                while not it["ready"]():
                    if not w.emit_task(force=True):
                        return False
                    guard += 1
            else:
                return False
        w.qi += 1
        tok = w.e("\n".join(it["grp"]))
        if it.get("done"):
            it["done"](tok)
        return True

    def pre_wait(w, tok):
        e = w.e
        while e.vmq < tok + e.win and len(e.vm_t) > tok and e.vm_t[tok] > e.t:
            if not w.emit_q():
                break

    def emit_task(w, force=False, budget=None):
        e = w.e
        cands = []
        n = len(w.tasks)
        for k in range(n):
            tk = w.tasks[k]
            c = tk.peek()
            if c is not None:
                cands.append((tk, c))
        if not cands:
            if force:
                e.t += 50
                w.idle = getattr(w, "idle", 0) + 1
                assert w.idle < 2000, "deadlock in schedule: " + str([(t.name, t.done) for t in w.tasks])
                return any(not t.done for t in w.tasks)
            return False
        cands.sort(key=lambda x: -x[0].prio)
        for tk, c in cands:
            if isinstance(c, tuple):
                tk.cur = None
                c[0](*c[1:])
                return True
            if e.need_states(c) > 0:
                continue
            if budget is not None and c.cost > budget:
                continue
            tk.cur = None
            tk.tok = e.ins(c)
            return True
        if force:
            tk, c = cands[0]
            tk.cur = None
            tk.tok = e.ins(c)
            return True
        return False

    def run(w):
        e, cfg = w.e, w.cfg
        nf = len(w.frags)
        w.first_use = [None] * nf
        w.last_use = [None] * nf
        for i, m in enumerate(w.mf):
            for f in m[1]:
                if w.first_use[f] is None:
                    w.first_use[f] = i
                w.last_use[f] = i
        e.pre_vm_wait = w.pre_wait
        for i, (text, fr, si, grp_last, need) in enumerate(w.mf):
            for ev in need:
                while ev not in w.ev:
                    assert w.emit_task(force=True) or w.emit_q(force=True), f"MFMA {i} waits for {ev}"
            ins = Ins(text)
            for r in ins.srcab:
                while r in w.await_ld and w.await_ld[r] and w.await_ld[r][0][0] <= i:
                    qidx = w.await_ld[r][0][1]
                    while w.qi <= qidx:
                        assert w.emit_q(force=True), f"MFMA {i}: load blocked ({w.q[w.qi].get('name')})"
                    w.await_ld[r].pop(0)
            while w.ri <= max(fr):
                assert w.can_read()
                w.emit_read()
            if grp_last is not None and grp_last < w.ri:
                e.wait_lg(w.fragtok[grp_last])
            e.ins(ins)
            w.mi = i + 1
            sl = w.slots[si]
            extra = sl.extra
            ntask = 0
            while True:
                room = e.mfma_free - e.t
                if w.can_read() and w.first_use[w.ri] <= w.mi + sl.la and (room >= 4 or w.first_use[w.ri] <= w.mi + sl.la_min):
                    w.emit_read()
                    continue
                if w.qi < len(w.q) and room >= 4 and e.vm_free() <= e.t + cfg.margin and w.emit_q():
                    continue
                if room >= 4 and w.emit_task(budget=room + 4):
                    ntask += 1
                    continue
                if ntask < extra(i) and w.emit_task():
                    ntask += 1
                    continue
                break
        while w.qi < len(w.q):
            assert w.emit_q(force=True)
        while any(not t.done for t in w.tasks):
            w.emit_task(force=True)
        e.pre_vm_wait = None


def main_phases(g):
    e, v, cfg = g.e, g.v, g.cfg
    w = Weaver(g)
    g.vtop = g.persist_top
    S = g.alloc("accS", 40, 4)
    G = g.alloc("accG", 64, 4)
    TS = g.alloc("ts", 32, 4)
    TW = g.alloc("tw", 20, 4)
    PL = g.alloc("poll", 4, 4)
    TF = g.alloc("tf", 256 - g.vtop)
    xn = lambda ks, m: ar((ks * 2 + m) * 4, 4)
    ts = lambda i, k=1: vr(TS + i, k)
    vD5 = [v["dma"] + k for k in range(5)]
    vL5 = [v["lin"]] * 4 + [v["lin4"]]
    Y, GL = S, S + 20
    w.await_ld = {}
    ev = w.ev

    def await_(reg0, first_mi, qidx):
        w.await_ld.setdefault(("a", reg0), []).append((first_mi, qidx))

    ex0 = lambda i: 0
    for i in range(5):
        w.slots.append(Slot("ssm1", la=8, la_min=4, extra=ex0))
        for kk in range(2):
            for t in range(5):
                f = [w.add_frag(i, "rdB", s, kk * 10240 + t * 1024) for s in range(2)]
                for m in range(2):
                    for s in range(2):
                        ks = 4 * i + 2 * kk + s
                        acc = vr(S + 8 * t + 4 * m, 4)
                        c = "0" if ks == 0 else acc
                        w.mf.append((f"{MF} {acc}, {xn(ks,m)}, {w.fb(f[s])}, {c}", [f[s]], i,
                                     f[1] if (m, s) == (0, 0) else None, []))
    mi_ssm_end = len(w.mf)
    mi_unit_end = []
    xn_last = {}
    exg = (lambda i: 1 if i % cfg.extra_every == 0 else 0) if cfg.extra_every else ex0
    for u in range(3):
        for sl in range(4):
            si = len(w.slots)
            w.slots.append(Slot("glu1", la=10, la_min=5, extra=exg))
            for tile in range(4):
                f = [w.add_frag(si, "lin", 0, j * 4096 + tile * 1024) for j in range(5)]
                for m in range(2):
                    for j in range(5):
                        ks = 5 * sl + j
                        acc = vr(G + 32 * (u & 1) + 8 * tile + 4 * m, 4)
                        c = "0" if ks == 0 else acc
                        need = ["epi0"] if (u == 2 and sl == 0 and tile == 0 and m == 0 and j == 0) else []
                        gl = {0: f[2], 3: f[4]}.get(j) if m == 0 else None
                        xn_last[(ks, m)] = len(w.mf)
                        w.mf.append((f"{MF} {acc}, {w.fb(f[j])}, {xn(ks,m)}, {c}", [f[j]], si, gl, need))
        mi_unit_end.append(len(w.mf))
    n1 = len(w.slots)
    NAB = 54
    abuf = lambda k: (200 + 4 * (k % NAB)) if (k % NAB) < 14 else 4 * ((k % NAB) - 14)
    a_first, a_last = {}, {}
    nslot2 = 22 if cfg.stop >= 2 else 0
    ex2 = lambda i: cfg.extra2
    for p in range(nslot2):
        si = len(w.slots)
        ssm = p < 10
        w.slots.append(Slot("p2", la=8, la_min=6, extra=ex2, p=p))
        for kk in range(2):
            order = [(t, s) for t in range(5) for s in range(2)]
            if p == nslot2 - 1:
                order = [(t, s) for s in range(2) for t in range(5)]
            prev = None
            for n_, (t, s) in enumerate(order):
                if ssm:
                    f = w.add_frag(si, "rdC", s, kk * 10240 + t * 1024)
                else:
                    f = w.add_frag(si, "lin", 0, kk * 10240 + s * 5120 + t * 1024)
                k = 4 * p + 2 * kk + s
                acc = vr((Y if ssm else GL) + 4 * t, 4)
                c = "0" if k in (0, 40) else acc
                a_first.setdefault(k, len(w.mf))
                a_last[k] = len(w.mf)
                need = ["ssm_regs_free"] if len(w.mf) == mi_unit_end[2] else []
                w.mf.append((f"{MF} {acc}, {w.fb(f)}, {ar(abuf(k),4)}, {c}", [f], si, f + 1 if n_ % 2 == 0 else None, need))
        if p == 9:
            mi_ssm2_end = len(w.mf)
    w.stamp_at = {0: "bar0", 5: "glu1", n1: "p2", n1 + 10: "p2glu"}

    always = lambda: True

    def q_dma(si, ready):
        sl = w.slots[si]
        pos = si % NRING
        if sl.kind == "ssm1":
            grps = g.dma_slot(pos, sBW, sBb, 256 * si, vD5)
        elif sl.kind == "glu1":
            grps = g.dma_slot(pos, sWS, sWPb, (si - 5) * SLOT, vL5, " sc1")
        elif sl.p < 10:
            grps = g.dma_slot(pos, sCRE if sl.p < 5 else sCIM, sCb, 256 * (sl.p % 5), vD5)
        else:
            grps = g.dma_slot(pos, sWS, sWDb, (sl.p - 10) * SLOT, vL5, " sc1")
        items = []
        for k, grp in enumerate(grps):
            it = dict(name=f"dma{si}.{k}", grp=grp, ready=(lambda si=si, r=ready: w.nbar >= si - 4 and r()))
            if k == 4:
                it["done"] = lambda tok, si=si: g.tokslot.__setitem__(si, tok)
            items.append(it)
        return items

    def q_xn(n):
        ks, m = n >> 1, n & 1
        pre = [f"s_add_u32 s{sV1}, s{sXN}, {1024*n}"] if n % 4 == 0 else []
        return dict(name=f"xn{n}", grp=pre + [f"buffer_load_dwordx4 {xn(ks,m)}, {vr(v['lin'])}, {srd(sWS)}, s{sV1} offen offset:{1024*(n%4)} sc1"],
                    ready=always, areg=(ks * 2 + m) * 4, first=0)

    def q_a(k):
        b = abuf(k)
        flag = "FH0" if k < 40 else "FH1"
        if k >= NAB:
            free = a_last[k - NAB]
        elif b < 160:
            free = xn_last[(b // 8, (b // 4) & 1)]
        else:
            free = -1
        pre = [f"s_add_u32 s{sV1}, s{sHL}, {1024*k}"] if k % 4 == 0 else []
        return dict(name=f"a{k}", grp=pre + [f"buffer_load_dwordx4 {ar(b,4)}, {vr(v['lin'])}, {srd(sWS)}, s{sV1} offen offset:{1024*(k%4)} sc1"],
                    ready=lambda: flag in ev and w.mi > free, areg=b, first=a_first[k])

    q = []
    rest = {i: q_dma(i, always) for i in range(g.nb_done, 5)}
    for n in range(40):
        if n % 8 == 0:
            i = n // 8 + cfg.b_lead
            for j in [j for j in rest if j <= i]:
                q += rest.pop(j)
        if n == cfg.w_first:
            q += q_dma(5, lambda: "F1" in ev)
        q.append(q_xn(n))
    first_glu = 6 if cfg.w_first < 40 else 5
    for si in range(first_glu, n1):
        q += q_dma(si, lambda: "F1" in ev)
        if si == cfg.wd_after:
            q.append(dict(name="ctouch", ready=always, grp=[
                f"v_min_u32 {vr(TW+16)}, 24, v0", f"v_lshlrev_b32 {vr(TW+16)}, 7, {vr(TW+16)}",
                f"s_mul_i32 s{sT1}, s2, 3200", f"s_cmp_eq_u32 s{sW}, 2", f"s_cselect_b32 s{sT2}, s{sT1}, {OOB}",
                f"buffer_load_dword {vr(TW+17)}, {vr(TW+16)}, {srd(sCRE)}, s{sT2} offen"]))
            q.append(dict(name="ctouch", ready=always, grp=[
                f"s_mul_i32 s{sT1}, s2, 3200", f"s_cmp_eq_u32 s{sW}, 3", f"s_cselect_b32 s{sT2}, s{sT1}, {OOB}",
                f"buffer_load_dword {vr(TW+18)}, {vr(TW+16)}, {srd(sCIM)}, s{sT2} offen"]))
            for i in range(4):
                pre = [f"s_min_u32 s{sT1}, s{sW}, 2", f"s_lshl_b32 s{sT1}, s{sT1}, 12", f"s_add_u32 m0, s{sT1}, {L_WDST}", "s_nop 0"] if i == 0 else \
                      [f"s_add_u32 s{sWdS}, s{sWdS}, {8*1280-1024}"]
                it = dict(name="wd", ready=always,
                          grp=pre + [f"buffer_load_dwordx4 {vr(v['wdg'])}, {srd(sWD)}, s{sWdS} offen offset:{1024*i} lds"])
                if i == 3:
                    it["done"] = lambda tok: ev.__setitem__("wd_ld", (tok, e.t))
                q.append(it)
    for p in range(nslot2 + cfg.a_lag):
        if p < nslot2:
            q += q_dma(n1 + p, (lambda: "cpat" in ev) if p < 10 else (lambda: "F2" in ev))
        pa = p - cfg.a_lag
        if pa >= 0:
            q += [q_a(4 * pa + j) for j in range(4)]
    w.q = q
    for qi, it in enumerate(q):
        if "areg" in it:
            await_(it["areg"], it["first"], qi)

    after_mi = lambda n: (lambda: w.mi >= n)
    has = lambda k: (lambda: k in ev)

    def after_t(dt):
        t0 = e.t
        return lambda: e.t >= t0 + dt

    def after_bar():
        n = w.nbar
        return lambda: w.nbar > n

    def setev(k, x=True):
        ev[k] = x

    def need_bar_lg():
        w.bar_lg = e.lgq

    def t_poll(name, start, setup, loads, tags, delay=700):
        yield start
        for s_ in setup:
            yield s_
        for l in loads:
            yield l
        yield after_t(delay)
        yield (g.poll_check, loads, tags)
        yield (setev, name)

    def flag_store(stage):
        return [f"s_add_u32 s{sT3}, s{sFH}, {stage*64*FSP}",
                f"buffer_store_dword {vr(v['tag']+1)}, {vr(v['lane0'])}, {srd(sWS)}, s{sT3} offen sc1"]

    def atomic(lines):
        return (lambda: e("\n".join(lines)),)

    def t_ssm():
        cAR, cAI, c1, c2 = v["cAR"], v["cAI"], v["c1"], v["c2"]
        b = lambda t, k: vr(S + 8 * t + k)
        yield after_mi(mi_ssm_end + 2)
        for k in range(1, 8):
            dst = lambda t: ts(16 + 5 * (k & 1) + t)
            src = (lambda t: b(t, 0)) if k == 1 else (lambda t: ts(16 + 5 * ((k - 1) & 1) + t))
            for t in range(5):
                yield f"v_fma_f32 {dst(t)}, {vr(cAR+t)}, {src(t)}, {b(t,k)}"
            for t in range(5):
                yield f"v_fmac_f32_dpp {dst(t)}, {src(t)}, {vr(cAI+t)} {DPPSW}"
        for t in range(5):
            yield f"ds_write_b32 {vr(v['etw'])}, {ts(21+t)} offset:{1280*t+4}"
        yield (need_bar_lg,)
        yield after_bar()
        for i in range(4):
            yield f"ds_read_b128 {ts(4*i,4)}, {vr(v['etr'])} offset:{16+16*i}"
        yield after_t(120)
        for s_ in range(1, 16):
            dst = vr(v["tag"]) if s_ == 15 else ts(26 + (s_ & 1))
            src = ts(0) if s_ == 1 else ts(26 + ((s_ - 1) & 1))
            yield f"v_fma_f32 {dst}, {vr(v['A8r'])}, {src}, {ts(s_)}"
            yield f"v_fmac_f32_dpp {dst}, {src}, {vr(v['A8i'])} {DPPSW}"
        yield atomic([f"s_add_u32 s{sT3}, s{sEGs}, 9600",
                      f"buffer_store_dwordx2 {vr(v['tag'],2)}, {vr(v['egst'])}, {srd(sWS)}, s{sT3} offen sc1"])
        yield (g.stamp, "Epub")
        yield after_t(cfg.s1_delay)
        loads = [g.poll_instrs(TS + 16 + 2 * i, 2, v["egoff"], sEGs, 640 * i) for i in range(5)]
        for l in loads:
            yield l
        yield after_t(800)
        yield (g.poll_check, loads, [TS + 17 + 2 * i for i in range(5)])
        yield (g.stamp, "Egot")
        for i in range(1, 5):
            yield f"v_fmac_f32 {ts(16+2*i)}, {vr(v['ALr'])}, {ts(14+2*i)}"
            yield f"v_fmac_f32_dpp {ts(16+2*i)}, {ts(14+2*i)}, {vr(v['ALi'])} {DPPSW}"
        yield f"v_mul_f32 {ts(26)}, {vr(v['Gr'])}, {ts(24)}"
        yield f"v_fmac_f32_dpp {ts(26)}, {ts(24)}, {vr(v['Gi'])} {DPPSW}"
        yield f"ds_bpermute_b32 {ts(27)}, {vr(v['bperm'])}, {ts(26)}"
        yield f"ds_bpermute_b32 {ts(28)}, {vr(v['bperm']+1)}, {ts(26)}"
        yield after_t(120)
        yield f"v_add_f32 {ts(26)}, {ts(26)}, {ts(27)}"
        yield f"v_add_f32 {ts(26)}, {ts(26)}, {ts(28)}"
        yield f"ds_write_b32 {vr(v['etd'])}, {ts(26)} offset:12"
        for s_ in range(15):
            src = ts(26) if s_ == 0 else ts(s_ - 1)
            yield f"v_fmac_f32 {ts(s_)}, {vr(v['A8r'])}, {src}"
            yield f"v_fmac_f32_dpp {ts(s_)}, {src}, {vr(v['A8i'])} {DPPSW}"
            if s_ % 4 == 3 or s_ == 14:
                yield f"ds_write_b128 {vr(v['etd'])}, {ts(s_//4*4,4)} offset:{16+16*(s_//4)}"
        yield (need_bar_lg,)
        yield after_bar()
        for t in range(5):
            yield f"ds_read_b32 {ts(16+t)}, {vr(v['etw'])} offset:{1280*t}"
        yield (need_bar_lg,)
        bar3 = after_bar()
        yield after_t(120)
        for k in range(8):
            src = (lambda t: ts(16 + t)) if k == 0 else (lambda t: b(t, k - 1))
            for t in range(5):
                yield f"v_fmac_f32 {b(t,k)}, {vr(cAR+t)}, {src(t)}"
            for t in range(5):
                yield f"v_fmac_f32_dpp {b(t,k)}, {src(t)}, {vr(cAI+t)} {DPPSW}"
        yield bar3
        yield has("wd_rd")
        n = 0
        for t in range(5):
            for m in range(2):
                o = 4 * (n & 1)
                n += 1
                for r in range(4):
                    yield f"v_mul_f32 {ts(o+r)}, {vr(c1+t)}, {b(t,4*m+r)}"
                for r in range(4):
                    yield f"v_fmac_f32_dpp {ts(o+r)}, {b(t,4*m+r)}, {vr(c2+t)} {DPPSW}"
                yield f"v_cvt_pk_bf16_f32 {ts(o)}, {ts(o)}, {ts(o+1)}"
                yield f"v_cvt_pk_bf16_f32 {ts(o+1)}, {ts(o+2)}, {ts(o+3)}"
                yield f"ds_write_b64 {vr(v['trw'])}, {ts(o,2)} offset:{(m*5+t)*512}"
            for h in range(2):
                yield f"ds_read_b64_tr_b16 {ts(8+4*t+2*h,2)}, {vr(v['trr'])} offset:{512*t+256*h}"
            if t > 0:
                yield f"buffer_store_dwordx4 {ts(4+4*t,4)}, {vr(v['hst'])}, {srd(sWS)}, s{sHSs} offen offset:{256*(t-1)} sc1"
            else:
                yield atomic([f"s_mul_i32 s{sHSs}, s{sC}, 1280", f"s_add_u32 s{sHSs}, s{sHSs}, s{sHS}"])
        yield (setev, "ssm_regs_free")
        yield after_t(100)
        yield f"buffer_store_dwordx4 {ts(24,4)}, {vr(v['hst'])}, {srd(sWS)}, s{sHSs} offen offset:1024 sc1"
        tok = e.vmq
        yield after_t(cfg.ack_delay)
        yield (e.wait_vm, tok)
        yield atomic(flag_store(0))
        yield (g.stamp, "hssm")
        yield (setev, "hssm_pub", e.t)

    def t_epi(u):
        base = G + 32 * (u & 1)
        yield after_mi(mi_unit_end[u] + 2) if mi_unit_end[u] + 2 <= len(w.mf) else after_mi(mi_unit_end[u])
        if u > 0:
            yield has(f"epi{u-1}")
        for m in range(2):
            gs = [base + 8 * b_ + 4 * m + r for b_ in range(2) for r in range(4)]
            for x in gs:
                yield f"v_mul_f32 {vr(x)}, 0xbfb8aa3b, {vr(x)}"
            for x in gs:
                yield f"v_exp_f32 {vr(x)}, {vr(x)}"
            for x in gs:
                yield f"v_add_f32 {vr(x)}, 1.0, {vr(x)}"
            for x in gs:
                yield f"v_rcp_f32 {vr(x)}, {vr(x)}"
            for x in gs:
                yield f"v_mul_f32 {vr(x)}, {vr(x)}, {vr(x+16)}"
            d = base + 16 + 4 * m
            for i in range(4):
                yield f"v_cvt_pk_bf16_f32 {vr(d+i)}, {vr(gs[2*i])}, {vr(gs[2*i+1])}"
            yield atomic([f"s_lshl_b32 s{sT3}, s{sC}, 10", f"s_add_u32 s{sT3}, s{sT3}, s{sHS}",
                          f"s_add_u32 s{sT3}, s{sT3}, {m*90112+40960+u*16384}",
                          f"buffer_store_dwordx4 {vr(d,4)}, {vr(v['lin'])}, {srd(sWS)}, s{sT3} offen sc1"])
        tok = e.vmq
        yield (setev, f"epi{u}")
        if u == 2:
            yield after_t(cfg.ack_delay)
            yield (e.wait_vm, tok)
            yield atomic(flag_store(1))
            yield (g.stamp, "hglu")
            yield (setev, "hglu_pub", e.t)

    def t_wd():
        yield has("wd_ld")
        yield after_t(1500)
        yield (e.wait_vm, ev["wd_ld"][0])
        for tt in range(4):
            for h in range(2):
                yield f"ds_read_b64_tr_b16 {vr(TW+4*tt+2*h,2)}, {vr(v['wdr'])} offset:{512*h+32*tt}"
        yield (need_bar_lg,)
        nb = after_bar()
        yield after_t(150)
        for tt in range(4):
            yield f"buffer_store_dwordx4 {vr(TW+4*tt,4)}, {vr(v['lin'])}, {srd(sWS)}, s{sWdD+tt} offen sc1"
            yield after_t(100)
        tok = e.vmq
        yield nb
        yield (setev, "wd_rd")
        yield after_t(cfg.ack_delay)

        def nb_vm():
            w.bar_vm = tok
        yield (nb_vm,)
        yield after_bar()
        yield atomic([f"s_lshl2_add_u32 s{sT3}, s2, {F2}", f"s_cmp_eq_u32 s{sW}, 0", f"s_cselect_b32 s{sT3}, s{sT3}, {OOB}",
                      f"buffer_store_dword {vr(v['tag']+1)}, {vr(v['lane0'])}, {srd(sWS)}, s{sT3} offen sc1"])
        yield (setev, "F2_pub")

    def t_cpat():
        yield lambda: 4 in g.tokslot
        d = v["dma"]
        yield atomic([f"s_and_b32 s{sT3}, s{sW}, 1", f"s_lshl_b32 s{sT3}, s{sT3}, 4", f"v_xor_b32 {vr(d)}, s{sT3}, {vr(d)}"])
        for k in range(1, 4):
            yield f"v_add_u32 {vr(d+k)}, {k*(20480-1024)}, {vr(d)}"
        yield f"v_add_u32 {vr(d+4)}, {4*20480}, {vr(d)}"
        yield (setev, "cpat")

    def t_f2():
        yield has("F2_pub")
        yield has("FH0")
        yield f"s_mov_b32 s{sF0}, {F2}"
        l = g.poll_instrs(PL, 4, v["lin"], sF0)
        yield l
        yield after_t(700)
        yield (g.poll_check, [l], [PL, PL + 1, PL + 2, PL + 3])
        yield (setev, "F2")
        yield (g.epoch_update,)

    F1l = g.poll_instrs(PL, 1, PL + 1, sFHp)
    w.tasks.append(Task("F1", t_poll("F1", after_mi(cfg.f1_mi), [f"v_and_b32 {vr(PL+1)}, 0x1f0, {vr(v['lin'])}"], [F1l], [PL], 600), 5))
    w.tasks.append(Task("ssm", t_ssm(), 3))
    w.tasks.append(Task("wd", t_wd(), 4))
    w.tasks.append(Task("cpat", t_cpat(), 1))
    for u in range(3):
        w.tasks.append(Task(f"epi{u}", t_epi(u), 2 if u else 2.5))
    if cfg.stop >= 2:
        l0 = g.poll_instrs(PL, 1, v["fpoll"], sFHl)
        w.tasks.append(Task("FH0", t_poll("FH0", lambda: "hssm_pub" in ev and e.t >= ev["hssm_pub"] + cfg.flag_delay, [], [l0], [PL]), 5))
        w.tasks.append(Task("F2", t_f2(), 5))
        l1 = g.poll_instrs(PL, 1, v["fpoll"], sF1)
        w.tasks.append(Task("FH1", t_poll("FH1", lambda: "F2" in ev and "hglu_pub" in ev and e.t >= ev["hglu_pub"] + cfg.flag_delay,
                                          [f"s_add_u32 s{sF1}, s{sFHl}, {64*FSP}"], [l1], [PL]), 5))

        XR, XF, AD, LA = G, G + 12, G + 32, G + 40
        NR, DR, FW = G + 46, TW, G + 45

        def t_fin():
            yield has("epi2")
            yield has("F2_pub")
            yield after_t(100)
            tf = lambda i: vr(TF + i)
            yield atomic([f"s_lshl2_add_u32 s{sPXs}, s{sR2}, s{sW}", f"s_lshl3_add_u32 s{sPXl}, s{sPXs}, s{sTY}",
                          f"s_mul_i32 s{sPXl}, s{sPXl}, 5120", f"s_mul_i32 s{sT3}, s{sJ2}, 160",
                          f"s_add_u32 s{sPXl}, s{sPXl}, s{sT3}", f"s_mul_i32 s{sFPl}, s{sW}, 5376",
                          f"s_add_u32 s{sFPl}, s{sFPl}, {L_FIN}"])
            for i in range(5):
                yield f"v_add_u32 {tf(0)}, {64*i}, v0"
                yield f"v_mul_u32_u24 {tf(1)}, 3277, {tf(0)}"
                yield f"v_lshrrev_b32 {tf(1)}, 16, {tf(1)}"
                yield f"v_mul_u32_u24 {tf(2)}, 20, {tf(1)}"
                yield f"v_sub_u32 {tf(2)}, {tf(0)}, {tf(2)}"
                yield f"v_add_lshl_u32 {tf(0)}, {tf(0)}, {tf(1)}, 4"
                yield f"v_add_u32 {vr(LA+i)}, s{sFPl}, {tf(0)}"
                yield f"v_and_b32 {tf(0)}, 12, {tf(1)}"
                yield f"v_add_u32 {tf(1)}, {tf(1)}, {tf(0)}"
                yield f"v_mul_u32_u24 {tf(1)}, 1280, {tf(1)}"
                yield f"v_lshl_add_u32 {vr(AD+i)}, {tf(2)}, 3, {tf(1)}"
                yield f"buffer_load_dwordx2 {vr(XR+2*i,2)}, {vr(AD+i)}, {srd(sX)}, s{sPXl} offen"
            yield f"v_lshrrev_b32 {tf(0)}, 4, v0"
            yield f"v_and_b32 {tf(1)}, 15, v0"
            yield f"v_mul_u32_u24 {tf(2)}, 336, {tf(1)}"
            yield f"v_lshl_add_u32 {tf(2)}, {tf(0)}, 4, {tf(2)}"
            yield f"v_add_u32 {vr(FW)}, s{sFPl}, {tf(2)}"
            yield f"v_lshlrev_b32 {tf(3)}, 3, {tf(0)}"
            yield atomic([f"s_mul_i32 s{sT3}, s{sJ2}, 160", f"v_add_u32 {tf(3)}, s{sT3}, {tf(3)}"])
            for t in range(5):
                yield f"global_load_dwordx2 {vr(DR+2*t,2)}, {tf(3)}, s[{sDS}:{sDS+1}] offset:{32*t}"
            yield f"v_lshrrev_b32 {tf(2)}, 1, {tf(0)}"
            yield f"v_lshlrev_b32 {tf(2)}, 8, {tf(2)}"
            yield f"v_lshl_add_u32 {tf(2)}, {tf(1)}, 4, {tf(2)}"
            yield f"v_and_b32 {tf(0)}, 1, {tf(0)}"
            yield f"v_lshl_add_u32 {tf(2)}, {tf(0)}, 3, {tf(2)}"
            yield has("FH0")
            yield atomic([f"s_mul_i32 s{sPXs}, s{sPXs}, 40", f"s_add_u32 s{sPXs}, s{sPXs}, s{sTY}", f"s_lshl_b32 s{sPXs}, s{sPXs}, 10",
                          f"s_add_u32 s{sPXs}, s{sPXs}, {XN}"])
            for t in range(5):
                yield atomic([f"s_mul_i32 s{sT3}, s{sJ2}, 5", f"s_add_u32 s{sT3}, s{sT3}, {t}", f"s_and_b32 s{sT2}, s{sT3}, 1",
                              f"s_lshl_b32 s{sT3}, s{sT3}, 1", f"s_sub_u32 s{sT3}, s{sT3}, s{sT2}", f"s_lshl_b32 s{sT3}, s{sT3}, 9",
                              f"s_add_u32 s{sT3}, s{sT3}, s{sPXs}",
                              f"buffer_load_dwordx2 {vr(NR+2*t,2)}, {tf(2)}, {srd(sWS)}, s{sT3} offen sc1"])
            yield after_t(900)
            for i in range(10):
                yield f"v_lshlrev_b32 {vr(XF+2*i)}, 16, {vr(XR+i)}"
                yield f"v_and_b32 {vr(XF+2*i+1)}, 0xffff0000, {vr(XR+i)}"
            for i in range(5):
                yield f"v_lshlrev_b32 {vr(AD+i)}, 1, {vr(AD+i)}"
            yield f"s_lshl_b32 s{sPXl}, s{sPXl}, 1"
            yield after_mi(mi_ssm2_end + 4)
            for i in range(10):
                yield f"v_lshlrev_b32 {tf(0)}, 16, {vr(NR+i)}"
                yield f"v_lshlrev_b32 {tf(1)}, 16, {vr(DR+i)}"
                yield f"v_and_b32 {tf(2)}, 0xffff0000, {vr(NR+i)}"
                yield f"v_and_b32 {tf(3)}, 0xffff0000, {vr(DR+i)}"
                yield f"v_fmac_f32 {vr(Y+2*i)}, {tf(0)}, {tf(1)}"
                yield f"v_fmac_f32 {vr(Y+2*i+1)}, {tf(2)}, {tf(3)}"
        w.tasks.append(Task("fin", t_fin(), 1))

    e.t = 0
    e.vm_t = [0] * (e.vmq + 1)
    for _ in range(cfg.first_burst):
        w.emit_q()
    w.run()
    g.weaver = w
    if cfg.stop < 2:
        e.wait_all_vm()
        return
    g.stamp("mfend")
    e(f"s_mov_b32 s{sT2}, 0xbfb8aa3b\ns_mov_b32 s{sT3}, 0xbfb8aa3b")
    for t in range(5):
        z = TS + 4 * t
        a = GL + 4 * t
        y = Y + 4 * t
        for h in (0, 2):
            e(f"v_pk_mul_f32 {vr(z+h,2)}, {vr(a+h,2)}, s[{sT2}:{sT3}]")
        for r in range(4):
            e(f"v_exp_f32 {vr(z+r)}, {vr(z+r)}")
        for h in (0, 2):
            e(f"v_pk_mul_f32 {vr(y+h,2)}, {vr(y+h,2)}, {vr(a+h,2)}")
        for h in (0, 2):
            e(f"v_pk_add_f32 {vr(z+h,2)}, {vr(z+h,2)}, 1.0 op_sel_hi:[1,0]")
        for r in range(4):
            e(f"v_rcp_f32 {vr(z+r)}, {vr(z+r)}")
        for h in (0, 2):
            e(f"v_pk_mul_f32 {vr(y+h,2)}, {vr(y+h,2)}, {vr(z+h,2)}")
        e(f"ds_write_b128 {vr(FW)}, {vr(y,4)} offset:{64*t}")
    for i in range(5):
        e(f"ds_read_b128 {ts(4*i,4)}, {vr(LA+i)}")
    for i in range(5):
        for h in (0, 2):
            e(f"v_pk_add_f32 {ts(4*i+h,2)}, {ts(4*i+h,2)}, {vr(XF+4*i+h,2)}")
        e(f"buffer_store_dwordx4 {ts(4*i,4)}, {vr(AD+i)}, {srd(sOUT)}, s{sPXl} offen{cfg.out_flags}")
    if cfg.stamps:
        e.wait_all_vm()
```

```python
import sys
from emit import Emitter, Ins

KNAME = "recurrent_scan__ssm_conv_s5__glu_gated_glu__prompt_kernel"

FSP = 4352
EPOCH = 0
F0 = 0x2000
F1 = F0 + 64 * FSP
F2 = F1 + 8 * FSP
FH = F2 + FSP
FP = FH + 192 * FSP
EG = 0x180000
XN = 0x200000
WP = XN + 2621440
WDP = WP + 3932160
HB = WDP + 1966080
PX = HB + 128 * 90112
STAMP = PX + 1024 * 5120
WSZ = 268435456
OOB = 0x7FF00000
assert FP + 1024 * 128 <= EG

SLOT = 20480
NRING = 7
SCR = NRING * SLOT
L_WST = 5 * SLOT
L_LN = 6 * SLOT
L_CT = 6 * SLOT + 11520
L_WDST = SCR + 8192
L_ET = SCR
L_TR = SCR

sX, sWS, sOUT, sBW, sCRE, sCIM, sWU, sWD = 4, 8, 12, 16, 20, 24, 28, 32
sW, sR, sC, sR2, sJ2, sTY, sE = 36, 37, 38, 39, 40, 41, 42
sXN, sWPb, sLW, sHS, sHL, sWDb, sCb = 43, 44, 45, 46, 47, 48, 49
sT0, sT1, sT2, sT3, sT4, sT5 = 50, 51, 52, 53, 54, 55
sFH, sFHp, sEGs, sHL2, sSP = 56, 57, 58, 59, 60
sBb = 61
sHSs = 61
sF0, sF1, sF0p, sFHl = 0, 1, 3, 95
sWdS, sWdD = 90, 91
sDS = 62
sST = 64
sV0, sV1 = 96, 97
sPXs, sPXl, sFPs, sFPl = 98, 99, 100, 101


def srd(n):
    return f"s[{n}:{n+3}]"


def vr(n, k=1):
    return f"v{n}" if k == 1 else f"v[{n}:{n+k-1}]"


def ar(n, k=1):
    return f"a{n}" if k == 1 else f"a[{n}:{n+k-1}]"


class Cfg:
    stamps = False
    stop = 99
    zsplit = False
    nostamp = "issued xarr bar0 flag1"
    bar_cost = 20
    margin = 0
    extra_every = 4
    extra2 = 2
    b_lead = 1
    w_first = 32
    wd_after = 8
    a_lag = 1
    s1_delay = 1200
    ack_delay = 1000
    flag_delay = 1200
    f1_mi = 60
    first_burst = 8
    out_flags = ""


class Gen:
    def __init__(g, cfg):
        g.cfg = cfg
        g.e = Emitter()
        g.nst = 0
        g.npoll = 0
        g.vtop = 0
        g.v = {}

    def alloc(g, name, n=1, align=1):
        g.vtop = (g.vtop + align - 1) // align * align
        g.v[name] = g.vtop
        g.vtop += n
        assert g.vtop <= 256, "out of VGPRs"
        return g.v[name]

    def stamp(g, name):
        if g.cfg.stamps and name not in g.cfg.nostamp.split():
            assert g.nst < 13
            g.e.raw(f"    s_memrealtime s[{sST+2*g.nst}:{sST+2*g.nst+1}]")
            g.e.smem_out = True
            g.e.pos += 1
            g.stnames.append(name)
            g.nst += 1

    def poll_instrs(g, dst, n, voff, soff, imm=0):
        op = {1: "dword", 2: "dwordx2", 4: "dwordx4"}[n]
        return f"buffer_load_{op} {vr(dst,n)}, {vr(voff)}, {srd(sWS)}, s{soff} offen offset:{imm} sc1"

    def poll_check(g, loads, tagregs):
        e = g.e
        k = g.npoll
        g.npoll += 1

        def cmp_seq():
            s = [f"v_cmp_ne_u32 vcc, s{sE}, {vr(tagregs[0])}"]
            for t in tagregs[1:]:
                s.append(f"v_cmp_ne_u32 s[{sT4}:{sT5}], s{sE}, {vr(t)}")
                s.append("s_nop 0")
                s.append(f"s_or_b64 vcc, vcc, s[{sT4}:{sT5}]")
            return s
        for l in cmp_seq():
            e(l)
        e("s_cmp_lg_u64 vcc, 0")
        e(f"s_cbranch_scc1 L_slow{k}")
        e.label(f"L_ok{k}")
        t = e.tail
        t.append(f"L_slow{k}:")
        t.append(f"    s_mov_b32 s{sSP}, 0")
        t.append(f"L_spin{k}:")
        t.append("    s_sleep 2")
        for l in loads:
            t.append("    " + l)
        t.append("    s_waitcnt vmcnt(0)")
        for l in cmp_seq():
            t.append("    " + l)
        t.append("    s_nop 0")
        t.append("    s_cmp_eq_u64 vcc, 0")
        t.append(f"    s_cbranch_scc1 L_ok{k}")
        t.append(f"    s_add_u32 s{sSP}, s{sSP}, 1")
        t.append(f"    s_cmp_lt_u32 s{sSP}, 0x40000")
        t.append(f"    s_cbranch_scc1 L_spin{k}")
        t.append(f"    s_branch L_ok{k}")

    def dma_slot(g, pos, srdn, sbase, off, vregs, flags=""):
        out = []
        for k in range(5):
            pre = []
            if k == 0:
                pre = [f"s_add_u32 m0, s{sLW}, {pos*SLOT}", f"s_add_u32 s{sV0}, s{sbase}, {off}"]
            if k == 4:
                pre = [f"s_add_u32 m0, s{sLW}, {pos*SLOT+4096}"]
            o = f" offset:{1024*k}" if 0 < k < 4 else ""
            out.append(pre + [f"buffer_load_dwordx4 {vr(vregs[k])}, {srd(srdn)}, s{sV0} offen{o}{flags} lds"])
        return out

    def prologue(g):
        e, A = g.e, g.alloc
        g.stnames = []
        vL = A("lane")
        vLin = A("lin", 3)
        vLin4 = A("lin4")
        vD = A("dma", 5)
        vRB = A("rdB", 2)
        vRC = A("rdC", 2)
        vRA = A("rdcur", 4)
        vOne = A("lane0")
        vTag = A("tag", 2, 2)
        for n in ("cAR", "cAI", "c1", "c2"):
            A(n, 5)
        for n in ("A8r", "A8i", "ALr", "ALi", "Gr", "Gi", "etw", "etr", "etd"):
            A(n)
        A("bperm", 2)
        for n in ("egoff", "egst", "trw", "trr", "hst", "fpoll", "wdg", "wdr"):
            A(n)
        vEGs = g.v["egst"]
        g.persist_top = g.vtop
        T = A("tmp", 100, 4)
        t = lambda i, k=1: vr(T + i, k)

        e(f"s_cmp_ge_u32 s2, 256\ns_cbranch_scc1 L_end")
        if g.cfg.stamps:
            e("s_memrealtime s[98:99]")
        e(f"s_load_dwordx16 s[64:79], s[0:1], 0\ns_load_dwordx16 s[80:95], s[0:1], 64")
        e(f"s_getpc_b64 s[{sT0}:{sT1}]")
        e.label("L_pc")
        e(f"""
        s_lshr_b32 s{sT2}, s2, 3
        v_lshrrev_b32 {t(0)}, 6, v0
        v_and_b32 {t(9)}, 7, v0
        s_lshl_b32 s{sT3}, s{sT2}, 3
        v_readfirstlane_b32 s{sW}, {t(0)}
        v_lshl_add_u32 {t(1)}, {t(0)}, 8, {t(9)}
        v_add_lshl_u32 {t(1)}, {t(1)}, s{sT3}, 7
        """)
        e.raw(f"    v_min_u32 {t(1)}, L_code_end-L_pc-4, {t(1)}")
        e.pos += 1
        e(f"""
        v_mov_b32 {t(3)}, s{sT1}
        v_add_co_u32 {t(2)}, vcc, s{sT0}, {t(1)}
        v_and_b32 v0, 63, v0
        s_and_b32 s{sR}, s2, 1
        v_addc_co_u32 {t(3)}, vcc, 0, {t(3)}, vcc
        global_load_dword {t(96)}, {t(2,2)}, off
        """)
        e(f"""
        s_lshl_b32 s{sR}, s{sR}, 3
        s_and_b32 s{sT2}, s{sT2}, 7
        s_add_u32 s{sR}, s{sR}, s{sT2}
        s_bfe_u32 s{sT0}, s2, {(2<<16)|1}
        s_lshr_b32 s{sT1}, s2, 6
        s_lshl2_add_u32 s{sC}, s{sT0}, s{sT1}
        s_lshl2_add_u32 s{sFH}, s{sR}, s{sT0}
        s_and_b32 s{sT4}, s{sT1}, 1
        s_lshl1_add_u32 s{sT2}, s{sFH}, s{sT4}
        s_lshr_b32 s{sT5}, s{sW}, 1
        s_lshl1_add_u32 s{sT2}, s{sT2}, s{sT5}
        s_lshr_b32 s{sT1}, s{sT1}, 1
        s_lshl1_add_u32 s{sT2}, s{sT2}, s{sT1}
        s_and_b32 s{sT3}, s{sW}, 1
        s_lshl1_add_u32 s{sT2}, s{sT2}, s{sT3}
        s_mul_i32 s{sT2}, s{sT2}, 2560
        v_lshrrev_b32 {t(5)}, 5, v0
        v_and_b32 {t(6)}, 31, v0
        v_mul_u32_u24 {t(7)}, 1280, {t(5)}
        v_lshl_add_u32 {t(7)}, {t(6)}, 3, {t(7)}
        s_mov_b32 s{sX+2}, 2621440
        s_mov_b32 s{sX+3}, 0x20000
        s_mov_b32 s{sBW+2}, 819200
        s_mov_b32 s{sBW+3}, 0x20000
        s_mov_b32 s{sWU+2}, 1966080
        s_mov_b32 s{sWU+3}, 0x20000
        """)
        e(f"""
        s_lshl4_add_u32 s{sHL}, s{sT4}, s{sR}
        s_lshl1_add_u32 s{sHS}, s{sHL}, s{sT5}
        s_mul_i32 s{sXN}, s{sHS}, 205
        s_lshr_b32 s{sXN}, s{sXN}, 12
        s_mul_i32 s{sWDb}, s{sXN}, 20
        s_sub_u32 s{sWDb}, s{sHS}, s{sWDb}
        s_lshr_b32 s{sCb}, s{sC}, 1
        s_mul_i32 s{sWPb}, s{sCb}, 3
        s_add_u32 s{sWPb}, s{sWPb}, s{sXN}
        s_mul_i32 s{sV0}, s{sWDb}, 768
        s_add_u32 s{sV0}, s{sV0}, s{sWPb}
        s_lshl_b32 s{sV0}, s{sV0}, 7
        s_cmp_lt_u32 s{sHS}, 60
        s_cselect_b32 s{sV0}, s{sV0}, {OOB}
        s_lshl_b32 s{sHL2}, s{sW}, 12
        s_add_u32 m0, s{sHL2}, {L_WST}
        v_lshrrev_b32 {t(8)}, 3, v0
        v_mul_u32_u24 {t(14)}, 3072, {t(8)}
        v_lshl_add_u32 {t(14)}, {t(9)}, 4, {t(14)}
        v_min_u32 {t(4)}, 12, v0
        v_lshlrev_b32 {t(4)}, 7, {t(4)}
        s_lshl4_add_u32 s{sV1}, s{sC}, s{sR}
        s_mul_i32 s{sV1}, s{sV1}, 3200
        s_mul_i32 s{sT0}, s{sT5}, 1536
        s_add_u32 s{sV1}, s{sV1}, s{sT0}
        s_cmp_eq_u32 s{sT3}, 0
        """)
        e(f"s_mov_b64 s[{sX}:{sX+1}], s[64:65]")
        X0 = 20
        for i in range(5):
            e(f"buffer_load_dwordx2 {t(X0+2*i,2)}, {t(7)}, {srd(sX)}, s{sT2} offen offset:{256*i}")
        e(f"""
        s_cselect_b64 s[{sBW}:{sBW+1}], s[70:71], s[72:73]
        s_cselect_b64 s[{sWU}:{sWU+1}], s[84:85], s[86:87]
        buffer_load_dword {t(97)}, {t(4)}, {srd(sBW)}, s{sV1} offen
        s_load_dword s{sE}, s[94:95], {EPOCH}
        v_min_u32 {t(16)}, 39, v0
        s_mul_i32 s{sT0}, s{sC}, 40
        v_add_lshl_u32 {t(16)}, {t(16)}, s{sT0}, 1
        global_load_ushort {t(17)}, {t(16)}, s[66:67]
        global_load_ushort {t(18)}, {t(16)}, s[68:69]
        global_load_ushort {t(19)}, {t(16)}, s[78:79]
        """)
        for i in range(4):
            tokW = e(f"buffer_load_dwordx4 {t(14)}, {srd(sWU)}, s{sV0} offen offset:{1024*i} lds")
            if i < 3:
                e(f"s_add_u32 s{sV0}, s{sV0}, {8*3072-1024}")
        e(f"""
        s_mov_b64 s[{sWS}:{sWS+1}], s[94:95]
        s_mov_b32 s{sWS+2}, {WSZ}
        s_mov_b32 s{sWS+3}, 0x20000
        s_mov_b64 s[{sWD}:{sWD+1}], s[88:89]
        s_mov_b32 s{sWD+2}, 1966080
        s_mov_b32 s{sWD+3}, 0x20000
        s_mov_b64 s[{sCRE}:{sCRE+1}], s[74:75]
        s_mov_b32 s{sCRE+2}, 819200
        s_mov_b32 s{sCRE+3}, 0x20000
        s_mov_b64 s[{sCIM}:{sCIM+1}], s[76:77]
        s_mov_b32 s{sCIM+2}, 819200
        s_mov_b32 s{sCIM+3}, 0x20000
        s_mov_b64 s[{sOUT}:{sOUT+1}], s[90:91]
        s_mov_b32 s{sOUT+2}, 5242880
        s_mov_b32 s{sOUT+3}, 0x20000
        s_mov_b64 s[{sDS}:{sDS+1}], s[80:81]
        """)
        if g.cfg.stamps:
            e.raw(f"    s_mov_b32 s{sST}, s98")
            g.stnames += ["entry"]; g.nst += 1
        g.stamp("issued")
        F = 32
        f = lambda i, k=1: t(F + i, k)
        e(f"""
        s_mul_i32 s{sLW}, s{sW}, 5120
        v_lshlrev_b32 {vr(vLin)}, 4, v0
        v_lshrrev_b32 {t(52)}, 1, {t(6)}
        v_mul_u32_u24 {t(52)}, 144, {t(52)}
        v_lshl_add_u32 {t(52)}, {t(5)}, 4, {t(52)}
        v_and_b32 {t(53)}, 1, v0
        v_lshl_add_u32 {t(52)}, {t(53)}, 3, {t(52)}
        s_lshl_b32 s{sT0}, s{sW}, 5
        s_add_u32 s{sT0}, s{sT0}, {L_LN}
        v_add_u32 {t(52)}, s{sT0}, {t(52)}
        v_mul_u32_u24 {t(54)}, 144, {t(8)}
        v_lshl_add_u32 {t(54)}, {t(9)}, 4, {t(54)}
        s_mul_i32 s{sT0}, s{sW}, 1152
        s_add_u32 s{sT0}, s{sT0}, {L_LN}
        v_add_u32 {t(54)}, s{sT0}, {t(54)}
        v_and_b32 {t(55)}, 3, {t(8)}
        v_lshlrev_b32 {t(55)}, 8, {t(55)}
        v_lshl_add_u32 {t(55)}, {t(5)}, 11, {t(55)}
        v_lshl_add_u32 {t(55)}, {t(9)}, 4, {t(55)}
        """)
        e(f"""
        s_mul_i32 s{sPXs}, s{sFH}, 320
        s_lshl3_add_u32 s{sT0}, s{sT1}, s{sT4}
        s_add_u32 s{sPXs}, s{sPXs}, s{sT0}
        s_lshl_b32 s{sPXs}, s{sPXs}, 7
        s_add_u32 s{sPXs}, s{sPXs}, s{sHL2}
        s_add_u32 s{sPXs}, s{sPXs}, {XN}
        s_add_u32 s{sPXl}, s{sPXs}, 16384
        s_add_u32 s{sFPs}, s{sPXs}, 32768
        s_cmp_lt_u32 s{sW}, 2
        s_cselect_b32 s{sFPs}, s{sFPs}, {OOB}
        s_mul_i32 s{sFPl}, s{sWPb}, 80
        s_lshl1_add_u32 s{sT0}, s{sWDb}, s{sT3}
        s_add_u32 s{sFPl}, s{sFPl}, s{sT0}
        s_lshl_b32 s{sFPl}, s{sFPl}, 11
        s_add_u32 s{sFPl}, s{sFPl}, {WP}
        s_cmp_lt_u32 s{sHS}, 60
        s_cselect_b32 s{sFPl}, s{sFPl}, {OOB}
        s_mul_i32 s{sF0}, s{sFH}, {FSP}
        s_and_b32 s{sT0}, s{sC}, 3
        s_lshl2_add_u32 s{sF0}, s{sT0}, s{sF0}
        s_add_u32 s{sF0}, s{sF0}, {F0}
        s_mul_i32 s{sFHp}, s{sCb}, {FSP}
        s_add_u32 s{sFHp}, s{sFHp}, {F1}
        s_lshl4_add_u32 s{sF1}, s{sHL}, s{sFHp}
        s_cmp_eq_u32 s{sW}, 0
        s_cselect_b32 s{sF0}, s{sF0}, {OOB}
        s_cselect_b32 s{sF1}, s{sF1}, {OOB}
        v_lshrrev_b32 {t(4)}, 4, v0
        v_bfe_u32 {t(5)}, v0, 2, 2
        v_and_b32 {t(6)}, 3, v0
        v_lshl_add_u32 {t(7)}, {t(4)}, 3, {t(5)}
        v_lshlrev_b32 {t(7)}, 7, {t(7)}
        v_add_u32 {t(7)}, s{sHL2}, {t(7)}
        v_lshl_add_u32 {t(10)}, {t(6)}, 4, {t(7)}
        v_add_u32 {t(10)}, {L_WST}, {t(10)}
        """)
        g.misc_setup(T)
        for i in range(10):
            e(f"v_lshlrev_b32 {f(2*i)}, 16, {t(X0+i)}\nv_and_b32 {f(2*i+1)}, 0xffff0000, {t(X0+i)}")
        g.stamp("xarr")
        S = 56
        e(f"v_pk_add_f32 {t(S,2)}, {f(0,2)}, {f(2,2)}\nv_pk_add_f32 {t(S+2,2)}, {f(4,2)}, {f(6,2)}")
        for i in range(4, 10):
            d = S + 2 * (i & 1)
            e(f"v_pk_add_f32 {t(d,2)}, {t(d,2)}, {f(2*i,2)}")
        e(f"v_pk_add_f32 {t(S,2)}, {t(S,2)}, {t(S+2,2)}\nv_add_f32 {t(S)}, {t(S)}, {t(S+1)}")

        def red32(x, y):
            for m in ("quad_perm:[1,0,3,2]", "quad_perm:[2,3,0,1]", "row_half_mirror", "row_mirror"):
                e(f"v_add_f32_dpp {x}, {x}, {x} {m} row_mask:0xf bank_mask:0xf")
            e(f"v_mov_b32 {y}, {x}\nv_permlane16_swap_b32 {y}, {x}\ns_nop 0\nv_add_f32 {x}, {x}, {y}")

        def rbf(x):
            e(f"v_cvt_pk_bf16_f32 {x}, {x}, {x}\nv_and_b32 {x}, 0xffff0000, {x}")
        red32(t(S), t(S + 1))
        e(f"v_mul_f32 {t(S)}, 0x3acccccd, {t(S)}")
        Q = 60
        for i in range(10):
            d = Q + 2 * (i & 1)
            e(f"v_pk_add_f32 {t(64,2)}, {f(2*i,2)}, {t(S,2)} op_sel_hi:[1,0] neg_lo:[0,1] neg_hi:[0,1]")
            if i < 2:
                e(f"v_pk_mul_f32 {t(d,2)}, {t(64,2)}, {t(64,2)}")
            else:
                e(f"v_pk_fma_f32 {t(d,2)}, {t(64,2)}, {t(64,2)}, {t(d,2)}")
        e(f"v_pk_add_f32 {t(Q,2)}, {t(Q,2)}, {t(Q+2,2)}\nv_add_f32 {t(Q)}, {t(Q)}, {t(Q+1)}")
        rbf(t(S))
        cen = []
        for i in range(10):
            cen.append(f"v_pk_add_f32 {f(2*i,2)}, {f(2*i,2)}, {t(S,2)} op_sel_hi:[1,0] neg_lo:[0,1] neg_hi:[0,1]")
            cen.append(f"v_cvt_pk_bf16_f32 {t(X0+i)}, {f(2*i)}, {f(2*i+1)}")
            cen.append(f"v_lshlrev_b32 {f(2*i)}, 16, {t(X0+i)}")
            cen.append(f"v_and_b32 {f(2*i+1)}, 0xffff0000, {t(X0+i)}")
        x, y = t(Q), t(Q + 1)
        chain = [f"v_add_f32_dpp {x}, {x}, {x} {m} row_mask:0xf bank_mask:0xf"
                 for m in ("quad_perm:[1,0,3,2]", "quad_perm:[2,3,0,1]", "row_half_mirror", "row_mirror")]
        chain += [f"v_mov_b32 {y}, {x}", f"v_permlane16_swap_b32 {y}, {x}", f"v_add_f32 {x}, {x}, {y}",
                  f"v_mul_f32 {x}, 0x3acccccd, {x}", f"v_cvt_pk_bf16_f32 {x}, {x}, {x}", f"v_and_b32 {x}, 0xffff0000, {x}",
                  f"v_add_f32 {x}, 0x3727c5ac, {x}", f"v_cvt_pk_bf16_f32 {x}, {x}, {x}", f"v_and_b32 {x}, 0xffff0000, {x}",
                  f"v_sqrt_f32 {x}, {x}", f"v_cvt_pk_bf16_f32 {x}, {x}, {x}", f"v_and_b32 {x}, 0xffff0000, {x}",
                  f"v_rcp_f32 {x}, {x}"]
        for c_ in chain:
            e(c_)
            e(cen.pop(0)); e(cen.pop(0))
        for c_ in cen:
            e(c_)
        for i in range(10):
            e(f"v_pk_mul_f32 {f(2*i,2)}, {f(2*i,2)}, {t(Q,2)} op_sel_hi:[1,0]")
            e(f"v_cvt_pk_bf16_f32 {t(X0+i)}, {f(2*i)}, {f(2*i+1)}")
            if i & 1:
                e(f"ds_write_b64 {t(52)}, {t(X0+i-1,2)} offset:{2304*(i>>1)}")
        e.wait_all_lg()
        e("s_barrier")
        for i in range(3):
            e(f"ds_read_b128 {t(84+4*i,4)}, {t(54)} offset:{4608*i}")
        e(f"""
        s_mul_i32 s{sE}, s{sE}, 1664525
        s_add_u32 s{sE}, s{sE}, 1013904223
        v_mov_b32 {vr(vTag)}, 0
        v_mov_b32 {vr(vTag+1)}, s{sE}
        """)
        for i, so in enumerate((sPXs, sPXl, sFPs)):
            tokXN = e(f"buffer_store_dwordx4 {t(84+4*i,4)}, {t(55)}, {srd(sWS)}, s{so} offen sc1")
        g.stamp("xnst")
        g.ssm_consts(T)
        g.wd_setup(T)
        e.wait_vm(tokW)
        U = 68
        for gp in range(2):
            for b in range(2):
                for h in range(2):
                    e(f"ds_read_b64_tr_b16 {t(U+8*gp+4*b+2*h,2)}, {t(10)} offset:{512*h+64*gp+8*b}")
        e(f"s_add_u32 s{sV1}, s{sFPl}, 81920")
        e.wait_vm(tokXN)
        e("s_barrier")
        e(f"buffer_store_dword {vr(vTag+1)}, {vr(vOne)}, {srd(sWS)}, s{sF0} offen sc1")
        g.stamp("flag0")
        for gp in range(2):
            for b in range(2):
                tokRL = e(f"buffer_store_dwordx4 {t(U+8*gp+4*b,4)}, {vr(vLin)}, {srd(sWS)}, s{(sFPl,sV1)[gp]} offen offset:{1024*b} sc1")
        e(f"""
        s_sub_u32 s{sT1}, s{sEGs}, 640
        s_cmp_eq_u32 s{sR}, 0
        s_cselect_b32 s{sT1}, {OOB}, s{sT1}
        buffer_store_dwordx2 {vr(vTag,2)}, {vr(vEGs)}, {srd(sWS)}, s{sT1} offen sc1
        """)
        g.tokslot = {}
        vD5 = [vD + k for k in range(5)]

        def bslot(i):
            for grp in g.dma_slot(i, sBW, sBb, 256 * i, vD5):
                g.tokslot[i] = e("\n".join(grp))
        nb = 0
        while nb < g.cfg.nb_early:
            bslot(nb); nb += 1
        e.wait_vm(tokRL)
        e("s_barrier")
        e(f"buffer_store_dword {vr(vTag+1)}, {vr(vOne)}, {srd(sWS)}, s{sF1} offen sc1")
        g.stamp("flag1")
        while nb < g.cfg.nb_mid:
            bslot(nb); nb += 1
        e(f"v_lshlrev_b32 {t(2)}, 2, {t(6)}")
        p0 = g.poll_instrs(T + 3, 1, T + 2, sF0p)
        e(p0)
        while nb < g.cfg.nb_late:
            bslot(nb); nb += 1
        g.nb_done = nb
        g.poll_check([p0], [T + 3])
        g.stamp("S0")

    def wd_setup(g, T):
        e, v = g.e, g.v
        t = lambda i, k=1: vr(T + i, k)
        e(f"""
        s_lshl1_add_u32 s{sT1}, s2, s{sW}
        s_mul_i32 s{sT2}, s{sT1}, 6554
        s_lshr_b32 s{sT2}, s{sT2}, 16
        s_mul_i32 s{sT5}, s{sT2}, 10
        s_sub_u32 s{sT5}, s{sT1}, s{sT5}
        s_mul_i32 s{sWdS}, s{sT2}, 320
        s_add_u32 s{sWdS}, s{sWdS}, s{sT5}
        s_lshl_b32 s{sWdS}, s{sWdS}, 7
        s_mul_i32 s{sT3}, s{sT2}, 86
        s_lshr_b32 s{sT3}, s{sT3}, 8
        s_mul_i32 s{sT4}, s{sT3}, 3
        s_sub_u32 s{sT4}, s{sT2}, s{sT4}
        s_lshl4_add_u32 s{sT4}, s{sT4}, s{sT3}
        s_mul_i32 s{sT4}, s{sT4}, 5120
        s_add_u32 s{sT4}, s{sT4}, {WDP}
        s_lshl_b32 s{sT1}, s{sW}, 7
        s_and_b32 s{sT1}, s{sT1}, 256
        s_add_u32 s{sT1}, s{sT1}, s2
        s_cmp_lt_u32 s{sT1}, 240
        s_cselect_b32 s{sWdS}, s{sWdS}, {OOB}
        s_cselect_b32 s{sT4}, s{sT4}, {OOB}
        """)
        for tt in range(4):
            e(f"""
            s_lshl2_add_u32 s{sT1}, s{sT5}, {tt}
            s_mul_i32 s{sT2}, s{sT1}, 52
            s_lshr_b32 s{sT2}, s{sT2}, 8
            s_mul_i32 s{sT2}, s{sT2}, 235
            s_add_u32 s{sT1}, s{sT1}, s{sT2}
            s_lshl_b32 s{sT1}, s{sT1}, 10
            s_add_u32 s{sWdD+tt}, s{sT1}, s{sT4}
            """)

    def ssm_consts(g, T):
        e, v = g.e, g.v
        t = lambda i, k=1: vr(T + i, k)
        K = 20
        e(f"""
        v_lshlrev_b32 {t(17)}, 16, {t(17)}
        v_lshlrev_b32 {t(18)}, 16, {t(18)}
        v_lshlrev_b32 {t(19)}, 16, {t(19)}
        v_mul_f32 {t(19)}, 0x3fb8aa3b, {t(19)}
        v_exp_f32 {t(19)}, {t(19)}
        v_mul_f32 {t(34)}, {t(17)}, {t(17)}
        v_cvt_pk_bf16_f32 {t(19)}, {t(19)}, {t(19)}
        v_and_b32 {t(19)}, 0xffff0000, {t(19)}
        v_mul_f32 {t(32)}, {t(19)}, {t(17)}
        v_mul_f32 {t(33)}, {t(19)}, {t(18)}
        v_mul_f32 {t(32)}, 0x3fb8aa3b, {t(32)}
        v_mul_f32 {t(33)}, 0.15915494309189535, {t(33)}
        v_exp_f32 {t(32)}, {t(32)}
        v_fract_f32 {t(33)}, {t(33)}
        v_fmac_f32 {t(34)}, {t(18)}, {t(18)}
        v_cos_f32 {t(K)}, {t(33)}
        v_sin_f32 {t(K+1)}, {t(33)}
        v_rcp_f32 {t(34)}, {t(34)}
        v_mul_f32 {t(K)}, {t(K)}, {t(32)}
        v_mul_f32 {t(K+1)}, {t(K+1)}, {t(32)}
        v_add_f32 {t(34)}, {t(34)}, {t(34)}
        v_add_f32 {t(35)}, -1.0, {t(K)}
        v_mul_f32 {t(K+2)}, {t(35)}, {t(17)}
        v_fmac_f32 {t(K+2)}, {t(K+1)}, {t(18)}
        v_mul_f32 {t(K+3)}, {t(K+1)}, {t(17)}
        v_fma_f32 {t(K+3)}, -{t(35)}, {t(18)}, {t(K+3)}
        v_mul_f32 {t(K+2)}, {t(K+2)}, {t(34)}
        v_mul_f32 {t(K+3)}, {t(K+3)}, {t(34)}
        """)

        def cmul(dr, di, xr, xi, yr, yi):
            e(f"""
            v_mul_f32 {t(36)}, {xr}, {yr}
            v_mul_f32 {t(37)}, {xr}, {yi}
            v_fma_f32 {t(36)}, -{xi}, {yi}, {t(36)}
            v_fma_f32 {di}, {xi}, {yr}, {t(37)}
            v_mov_b32 {dr}, {t(36)}
            """)

        def csq(dr, di, xr, xi):
            e(f"""
            v_mul_f32 {t(36)}, {xi}, {xi}
            v_add_f32 {t(37)}, {xr}, {xr}
            v_fma_f32 {dr}, {xr}, {xr}, -{t(36)}
            v_mul_f32 {di}, {t(37)}, {xi}
            """)
        csq(t(K+4), t(K+5), t(K), t(K+1)); csq(t(K+4), t(K+5), t(K+4), t(K+5)); csq(t(K+4), t(K+5), t(K+4), t(K+5))
        csq(t(K+6), t(K+7), t(K+4), t(K+5))
        for _ in range(3):
            csq(t(K+6), t(K+7), t(K+6), t(K+7))
        csq(t(K+8), t(K+9), t(K+6), t(K+7)); csq(t(K+8), t(K+9), t(K+8), t(K+9))
        cmul(t(K+8), t(K+9), t(K+8), t(K+9), t(K+6), t(K+7))
        csq(t(K+10), t(K+11), t(K+8), t(K+9))
        e(f"""
        s_mul_i32 s{sT1}, s{sW}, 1920
        s_add_u32 s{sT1}, s{sT1}, {L_CT}
        v_min_u32 {t(32)}, 39, v0
        v_mul_u32_u24 {t(32)}, 48, {t(32)}
        v_add_u32 {t(32)}, s{sT1}, {t(32)}
        ds_write_b128 {t(32)}, {t(K,4)}
        ds_write_b128 {t(32)}, {t(K+4,4)} offset:16
        ds_write_b128 {t(32)}, {t(K+8,4)} offset:32
        v_bfe_u32 {t(33)}, v0, 1, 3
        v_mul_u32_u24 {t(33)}, 48, {t(33)}
        v_add_u32 {t(33)}, s{sT1}, {t(33)}
        v_mul_u32_u24 {t(34)}, 205, v0
        v_lshrrev_b32 {t(34)}, 12, {t(34)}
        v_mul_u32_u24 {t(35)}, 20, {t(34)}
        v_sub_u32 {t(35)}, v0, {t(35)}
        v_min_u32 {t(34)}, 2, {t(34)}
        s_mul_i32 s{sT2}, s{sW}, 20
        v_add_u32 {t(38)}, s{sT2}, {t(35)}
        v_lshrrev_b32 {t(39)}, 1, {t(38)}
        v_mul_u32_u24 {t(39)}, 48, {t(39)}
        v_add_u32 {t(39)}, s{sT1}, {t(39)}
        """)
        for tt in range(5):
            e(f"ds_read_b128 {t(40+4*tt,4)}, {t(33)} offset:{384*tt}")
        e(f"ds_read_b128 {t(60,4)}, {t(39)} offset:16\nds_read_b128 {t(64,4)}, {t(39)} offset:32")
        e(f"""
        v_lshlrev_b32 {t(36)}, 31, v0
        v_xor_b32 {t(37)}, 0x80000000, {t(36)}
        v_mul_u32_u24 {vr(v['etr'])}, 80, {t(38)}
        v_add_u32 {vr(v['etr'])}, {L_ET}, {vr(v['etr'])}
        v_cmp_gt_u32 vcc, 20, v0
        v_mov_b32 {t(68)}, {L_ET+6400}
        v_mul_u32_u24 {t(69)}, 3200, {t(34)}
        v_cndmask_b32 {vr(v['etd'])}, {t(68)}, {vr(v['etr'])}, vcc
        v_lshl_add_u32 {vr(v['egoff'])}, {t(35)}, 3, {t(69)}
        v_add_lshl_u32 {vr(v['bperm'])}, {t(35)}, 20, 2
        v_add_lshl_u32 {vr(v['bperm']+1)}, {t(35)}, 40, 2
        """)
        for tt in range(5):
            b = 40 + 4 * tt
            e(f"""
            v_mov_b32 {vr(v['cAR']+tt)}, {t(b)}
            v_xor_b32 {vr(v['cAI']+tt)}, {t(37)}, {t(b+1)}
            v_xor_b32 {vr(v['c1']+tt)}, {t(36)}, {t(b+2)}
            v_xor_b32 {vr(v['c2']+tt)}, 0x80000000, {t(b+3)}
            """)
        e(f"""
        v_cmp_eq_u32 vcc, 0, {t(34)}
        v_mov_b32 {vr(v['A8r'])}, {t(60)}
        v_xor_b32 {vr(v['A8i'])}, {t(37)}, {t(61)}
        v_mov_b32 {vr(v['ALr'])}, {t(62)}
        v_cndmask_b32 {t(64)}, {t(64)}, {t(66)}, vcc
        v_cndmask_b32 {t(65)}, {t(65)}, {t(67)}, vcc
        v_cmp_ne_u32 vcc, 2, {t(34)}
        v_xor_b32 {vr(v['ALi'])}, {t(37)}, {t(63)}
        v_xor_b32 {t(65)}, {t(37)}, {t(65)}
        v_cndmask_b32 {vr(v['Gr'])}, 1.0, {t(64)}, vcc
        v_cndmask_b32 {vr(v['Gi'])}, 0, {t(65)}, vcc
        """)

    def misc_setup(g, T):
        e, v = g.e, g.v
        t = lambda i, k=1: vr(T + i, k)
        e(f"""
        v_and_b32 {t(70)}, 15, v0
        v_add_u32 {vr(v['lin4'])}, 4096, {vr(v['lin'])}
        v_add_u32 {vr(v['lin']+1)}, 61440, {vr(v['lin'])}
        v_add_u32 {vr(v['lin']+2)}, 122880, {vr(v['lin'])}
        v_lshrrev_b32 {t(71)}, 1, {t(70)}
        v_and_b32 {t(72)}, 1, v0
        v_and_b32 {t(73)}, 6, {t(71)}
        v_or_b32 {t(73)}, {t(73)}, {t(72)}
        v_xor_b32 {t(73)}, {t(73)}, {t(4)}
        v_lshlrev_b32 {t(73)}, 4, {t(73)}
        v_lshl_add_u32 {t(73)}, {t(71)}, 7, {t(73)}
        v_mul_u32_u24 {t(72)}, 5120, {t(72)}
        v_add_u32 {vr(v['rdB'])}, {t(72)}, {t(73)}
        v_xor_b32 {vr(v['rdB']+1)}, 64, {vr(v['rdB'])}
        v_and_b32 {t(73)}, 6, {t(9)}
        v_xor_b32 {t(73)}, {t(73)}, {t(4)}
        v_lshlrev_b32 {t(73)}, 4, {t(73)}
        v_lshl_add_u32 {t(73)}, {t(9)}, 7, {t(73)}
        v_bfe_u32 {t(72)}, v0, 3, 1
        v_mul_u32_u24 {t(72)}, 5120, {t(72)}
        v_add_u32 {vr(v['rdC'])}, {t(72)}, {t(73)}
        v_xor_b32 {vr(v['rdC']+1)}, 64, {vr(v['rdC'])}
        v_and_b32 {t(11)}, 6, {t(8)}
        v_xor_b32 {t(11)}, {t(11)}, {t(9)}
        v_xor_b32 {t(11)}, s{sT3}, {t(11)}
        v_mul_u32_u24 {t(13)}, 1280, {t(8)}
        v_lshl_add_u32 {vr(v['dma'])}, {t(11)}, 4, {t(13)}
        v_add_u32 {vr(v['dma']+1)}, {1*(10240-1024)}, {vr(v['dma'])}
        v_add_u32 {vr(v['dma']+2)}, {2*(10240-1024)}, {vr(v['dma'])}
        v_add_u32 {vr(v['dma']+3)}, {3*(10240-1024)}, {vr(v['dma'])}
        v_add_u32 {vr(v['dma']+4)}, {4*10240}, {vr(v['dma'])}
        v_lshl_add_u32 {vr(v['wdg'])}, {t(9)}, 4, {t(13)}
        v_lshl_add_u32 {vr(v['wdr'])}, {t(6)}, 3, {t(7)}
        v_and_b32 {vr(v['wdr'])}, 0x1fff, {vr(v['wdr'])}
        v_add_u32 {vr(v['wdr'])}, {L_WDST}, {vr(v['wdr'])}
        v_mov_b32 {t(1)}, {OOB}
        v_cmp_eq_u32 vcc, 0, v0
        v_lshlrev_b32 {t(2)}, 3, v0
        s_mul_i32 s{sBb}, s{sC}, 400
        v_cndmask_b32 {vr(v['lane0'])}, {t(1)}, v0, vcc
        v_cmp_gt_u32 vcc, 20, v0
        s_add_u32 s{sBb}, s{sBb}, s{sT5}
        s_lshl_b32 s{sBb}, s{sBb}, 7
        v_cndmask_b32 {vr(v['egst'])}, {t(1)}, {t(2)}, vcc
        s_lshl_b32 s{sEGs}, s{sC}, 5
        s_add_u32 s{sEGs}, s{sEGs}, s{sR}
        s_lshl2_add_u32 s{sEGs}, s{sEGs}, s{sW}
        s_mul_i32 s{sEGs}, s{sEGs}, 160
        s_add_u32 s{sEGs}, s{sEGs}, {EG}
        v_mul_u32_u24 {t(72)}, 80, {t(70)}
        v_lshl_add_u32 {t(72)}, {t(4)}, 2, {t(72)}
        s_lshl_b32 s{sT1}, s{sW}, 4
        s_add_u32 s{sT1}, s{sT1}, {L_ET+12}
        v_add_u32 {vr(v['etw'])}, s{sT1}, {t(72)}
        s_add_u32 s{sT1}, s{sLW}, {L_TR}
        v_lshlrev_b32 {t(72)}, 5, {t(70)}
        v_lshl_add_u32 {t(72)}, {t(4)}, 3, {t(72)}
        v_add_u32 {vr(v['trw'])}, s{sT1}, {t(72)}
        v_lshrrev_b32 {t(72)}, 1, {t(4)}
        v_and_b32 {t(73)}, 1, {t(4)}
        v_mul_u32_u24 {t(74)}, 2560, {t(72)}
        v_lshl_add_u32 {t(74)}, {t(73)}, 5, {t(74)}
        v_lshl_add_u32 {t(74)}, {t(5)}, 6, {t(74)}
        v_lshl_add_u32 {t(74)}, {t(6)}, 3, {t(74)}
        v_add_u32 {vr(v['trr'])}, s{sT1}, {t(74)}
        v_mul_u32_u24 {t(74)}, 90112, {t(72)}
        v_mul_u32_u24 {t(73)}, 20480, {t(73)}
        v_add_u32 {t(74)}, {t(74)}, {t(73)}
        v_lshl_add_u32 {vr(v['hst'])}, {t(70)}, 4, {t(74)}
        v_lshlrev_b32 {vr(v['fpoll'])}, 2, {t(70)}
        """)
        e(f"""
        s_and_b32 s{sT1}, s2, 1
        s_lshl_b32 s{sT1}, s{sT1}, 3
        s_and_b32 s{sT2}, s2, 2
        s_lshl_b32 s{sT2}, s{sT2}, 1
        s_add_u32 s{sR2}, s{sT1}, s{sT2}
        s_bfe_u32 s{sT1}, s2, {(2<<16)|3}
        s_add_u32 s{sR2}, s{sR2}, s{sT1}
        s_lshr_b32 s{sJ2}, s2, 5
        s_bfe_u32 s{sTY}, s2, {(1<<16)|2}
        s_mul_i32 s{sWPb}, s{sC}, 245760
        s_add_u32 s{sWPb}, s{sWPb}, s{sLW}
        s_add_u32 s{sWPb}, s{sWPb}, {WP}
        s_mul_i32 s{sWDb}, s{sJ2}, 245760
        s_add_u32 s{sWDb}, s{sWDb}, s{sLW}
        s_add_u32 s{sWDb}, s{sWDb}, {WDP}
        s_mul_i32 s{sCb}, s{sJ2}, {80*1280}
        s_and_b32 s{sT1}, s{sW}, 1
        s_mul_i32 s{sT1}, s{sT1}, {8*1280}
        s_add_u32 s{sCb}, s{sCb}, s{sT1}
        s_lshr_b32 s{sT1}, s{sW}, 1
        s_lshl_b32 s{sT1}, s{sT1}, 7
        s_add_u32 s{sCb}, s{sCb}, s{sT1}
        s_lshl_b32 s{sT1}, s{sR2}, 2
        s_add_u32 s{sT1}, s{sT1}, s{sW}
        s_lshl_b32 s{sT2}, s{sT1}, 1
        s_add_u32 s{sT2}, s{sT2}, s{sTY}
        s_mul_i32 s{sHL}, s{sT2}, 90112
        s_add_u32 s{sHL}, s{sHL}, {HB}
        s_xor_b32 s{sT2}, s{sT2}, 1
        s_mul_i32 s{sHL2}, s{sT2}, 90112
        s_add_u32 s{sHL2}, s{sHL2}, {HB}
        s_mul_i32 s{sFHl}, s{sT1}, {FSP}
        s_add_u32 s{sFHl}, s{sFHl}, {FH}
        s_lshl2_add_u32 s{sT1}, s{sR}, s{sW}
        s_mul_i32 s{sXN}, s{sT1}, 40960
        s_add_u32 s{sXN}, s{sXN}, {XN}
        s_mul_i32 s{sHS}, s{sT1}, 180224
        s_add_u32 s{sHS}, s{sHS}, {HB}
        s_mul_i32 s{sT1}, s{sT1}, {FSP}
        s_add_u32 s{sF0p}, s{sT1}, {F0}
        s_lshl2_add_u32 s{sFH}, s{sC}, s{sT1}
        s_add_u32 s{sFH}, s{sFH}, {FH}
        """)

    def finish(g):
        e, v = g.e, g.v
        if g.cfg.stamps:
            g.stamp("end")
            e.wait_all_lg()
            e("s_nop 7")
            for i in range(g.nst):
                e(f"v_mov_b32 {vr(200+i)}, s{sST+2*i}")
            e(f"""
            s_lshl_b32 s{sT0}, s2, 2
            s_add_u32 s{sT0}, s{sT0}, s{sW}
            s_lshl_b32 s{sT0}, s{sT0}, 6
            s_add_u32 s{sT0}, s{sT0}, {STAMP}
            """)
            for i in range(0, g.nst, 4):
                e(f"buffer_store_dwordx4 {vr(200+i,4)}, {vr(v['lane0'])}, {srd(sWS)}, s{sT0} offen offset:{4*i}")
        e.label("L_end")
        e("s_endpgm")

    def epoch_update(g):
        e, v = g.e, g.v
        e(f"""
        s_lshl_b32 s{sT0}, s2, 2
        s_add_u32 s{sT0}, s{sT0}, s{sW}
        s_cmp_eq_u32 s{sT0}, 0
        s_cselect_b32 s{sT0}, {EPOCH}, {OOB}
        buffer_store_dword {vr(v['tag']+1)}, {vr(v['lane0'])}, {srd(sWS)}, s{sT0} offen sc1
        """)

    def build(g):
        g.prologue()
        if g.cfg.stop >= 1:
            from phases import main_phases
            main_phases(g)
        else:
            g.e.wait_all_vm()
        g.finish()
        head = f"""; Fused LayerNorm + S5 scan + GLU gate.  One persistent launch: 256 workgroups x 4 waves, one per CU.
; @launch grid=(256,1,1) block=(256,1,1) lds=163840
.amdgcn_target "amdgcn-amd-amdhsa--gfx950"
.text
.globl {KNAME}
.p2align 8
.type {KNAME},@function
{KNAME}:
"""
        foot = f"""L_code_end:
    s_endpgm
.section .rodata,"a"
.p2align 6
.amdhsa_kernel {KNAME}
  .amdhsa_next_free_vgpr 512
  .amdhsa_next_free_sgpr 102
  .amdhsa_accum_offset 256
  .amdhsa_group_segment_fixed_size 0
  .amdhsa_kernarg_size 128
  .amdhsa_user_sgpr_count 2
  .amdhsa_user_sgpr_kernarg_segment_ptr 1
  .amdhsa_system_sgpr_workgroup_id_x 1
.end_amdhsa_kernel
"""
        return head + g.e.text() + foot


def make(path, **kw):
    cfg = Cfg()
    cfg.nb_early = 2
    cfg.nb_mid = 2
    cfg.nb_late = 3
    for k, x in kw.items():
        setattr(cfg, k, x)
    g = Gen(cfg)
    s = g.build()
    open(path, "w").write(s)
    open(path + ".stamps", "w").write(" ".join(g.stnames))
    return g


if __name__ == "__main__":
    kw = {}
    for a in sys.argv[2:]:
        k, x = a.split("=")
        kw[k] = eval(x)
    g = make(sys.argv[1], **kw)
    if hasattr(g, "weaver"):
        print("stalls", [(a, b, c) for a, b, c in g.e.stall_log if c > 60][:60])
        print({k: x for k, x in g.weaver.ev.items()})
    print("lines", len(g.e.lines), "nops", g.e.nnop, "waits", g.e.nwait, g.e.count, "est cycles", g.e.t, "vtop", g.vtop)
```
